```python
import torch

def _softmax(x, axis=-1):
    return torch.softmax(x, dim=axis)
def _gelu(x):
    return torch.nn.functional.gelu(x, approximate="tanh")
def _silu(x):
    return torch.nn.functional.silu(x)
def _sigmoid(x):
    return torch.sigmoid(x)
def _layernorm(x, axis=-1, eps=1e-5):
    m = x.mean(dim=axis, keepdim=True)
    v = x.var(dim=axis, keepdim=True, unbiased=False)
    return (x - m) / torch.sqrt(v + eps)
def _scatter_add(tgt, idx, src, axis=0):
    return tgt.clone().index_add_(axis, idx, src)
def _segment_sum(src, seg, n):
    out = torch.zeros((n,) + src.shape[1:], dtype=src.dtype)
    return out.index_add_(0, seg, src)
def _pad(x, pw):
    flat = tuple(v for pair in reversed(pw) for v in pair)
    return torch.nn.functional.pad(x, flat)

kernel_name = 'recurrent_scan__gqa_block_cached__dense_activation_gelu__prompt'

def setup_inputs():

    _w = (lambda a: (lambda t: t.to(torch.bfloat16) if t.is_floating_point() else t)(torch.as_tensor(a)))
    def _A_setup():
        B, Sq, D = 1, 2048, 512
        Hq, Hkv, Sk, Dh = 32, 8, 2048, 128
        assert Hq % Hkv == 0, (Hq, Hkv)
        return {
            "x": _w((lambda *s: torch.randn(*s, dtype=torch.bfloat16) * 0.1)(B, Sq, D)),
            "k_cache": _w((lambda *s: torch.randn(*s, dtype=torch.bfloat16) * 0.8)(B, Hkv, Sk, Dh)),
            "v_cache": _w((lambda *s: torch.randn(*s, dtype=torch.bfloat16) * 3.2)(B, Hkv, Sk, Dh)),
            "wq": _w((lambda *s: torch.randn(*s, dtype=torch.bfloat16) * 0.8)(D, Hq * Dh) * (D ** -0.5)),
            "wo": _w((lambda *s: torch.randn(*s, dtype=torch.bfloat16) * 3.2)(Hq * Dh, D) * ((Hq * Dh) ** -0.5)),
        }
    _A_in = _A_setup()

    def _B_setup():
        B, S, D, F = 1, 2048, 512, 1792
        return {
            "x": _w((lambda *s: torch.randn(*s, dtype=torch.bfloat16) * 0.1)(B, S, D)),
            "w1": _w((lambda *s: torch.randn(*s, dtype=torch.bfloat16) * 3.2)(D, F) * (D ** -0.5)),
            "b1": _w((lambda *s: torch.randn(*s, dtype=torch.bfloat16) * 3.2)(F) * 0.01),
            "w2": _w((lambda *s: torch.randn(*s, dtype=torch.bfloat16) * 3.2)(F, D) * (F ** -0.5)),
            "b2": _w((lambda *s: torch.randn(*s, dtype=torch.bfloat16) * 3.2)(D) * 0.01),
        }
    _B_in = _B_setup()

    return {
        "A_x": _A_in["x"],
        "A_k_cache": _A_in["k_cache"],
        "A_v_cache": _A_in["v_cache"],
        "A_wq": _A_in["wq"],
        "A_wo": _A_in["wo"],
        "B_x": _B_in["x"],
        "B_w1": _B_in["w1"],
        "B_b1": _B_in["b1"],
        "B_w2": _B_in["w2"],
        "B_b2": _B_in["b2"],
    }

def reference(A_x, A_k_cache, A_v_cache, A_wq, A_wo, B_x, B_w1, B_b1, B_w2, B_b2):
    def _A_ref(x, k_cache, v_cache, wq, wo):
        B, Sq, D = x.shape
        Hq, Dh = 32, 128
        Hkv = k_cache.shape[1]
        rep = Hq // Hkv
        q = (lambda x, *d: x.permute(*d))((x @ wq).reshape(B, Sq, Hq, Dh), 0, 2, 1, 3)
        k = (lambda x, n, axis: torch.repeat_interleave(x, n, dim=axis))(k_cache, rep, axis=1)
        v = (lambda x, n, axis: torch.repeat_interleave(x, n, dim=axis))(v_cache, rep, axis=1)
        scores = torch.einsum("bhqd,bhkd->bhqk", q, k) * (Dh ** -0.5)
        p = _softmax(scores, axis=-1)
        o = torch.einsum("bhqk,bhkd->bhqd", p, v)
        return (lambda x, *d: x.permute(*d))(o, 0, 2, 1, 3).reshape(B, Sq, Hq * Dh) @ wo

    def _B_ref(x, w1, b1, w2, b2):
        h = torch.einsum("bsd,df->bsf", x, w1) + b1
        h = _gelu(h)
        return torch.einsum("bsf,fd->bsd", h, w2) + b2

    x = A_x
    xn = _layernorm(x, axis=-1)
    s = _A_ref(xn, A_k_cache, A_v_cache, A_wq, A_wo)
    g = _silu(_B_ref(xn, B_w1, B_b1, B_w2, B_b2))
    return x + s * g
```

```python
import re

def R(kind, n, cnt=1):
    if cnt == 1:
        return Reg(f"{kind}{n}", [(kind, n)])
    return Reg(f"{kind}[{n}:{n+cnt-1}]", [(kind, n + i) for i in range(cnt)])

class Reg:
    def __init__(s, text, regs): s.text = text; s.regs = regs
    def __str__(s): return s.text
    def __getitem__(s, i):
        k, n = s.regs[0]
        if isinstance(i, slice):
            st = i.start or 0
            return R(k, n + st, i.stop - st)
        return R(k, n + i)
def v(n, c=1): return R('v', n, c)
def a(n, c=1): return R('a', n, c)
def s(n, c=1): return R('s', n, c)
VCC = Reg("vcc", [('s', 'vcc')]); M0 = Reg("m0", [('s', 'm0')]); EXEC = Reg("exec", [('s', 'exec')])
SCC = ('s', 'scc')

def regs_of(x):
    return x.regs if isinstance(x, Reg) else []
def txt(x):
    if isinstance(x, Reg): return x.text
    if isinstance(x, float):
        import struct
        return hex(struct.unpack('<I', struct.pack('<f', x))[0])
    if isinstance(x, int):
        return str(x) if -16 <= x <= 64 else hex(x & 0xffffffff)
    return str(x)

class I:
    def __init__(s, text, cls, rd=(), wr=(), **kw):
        s.text = text; s.cls = cls; s.rd = list(rd); s.wr = list(wr)
        s.lrd = kw.get('lrd', [])
        s.lwr = kw.get('lwr', [])
        s.sub = kw.get('sub')
        s.srcc = kw.get('srcc', [])
        s.data = kw.get('data', [])
        s.pre_wait = {}
        s.pre_nop = 0
        s.comment = kw.get('comment')
    def __repr__(s): return s.text

def flat(*xs):
    o = []
    for x in xs: o += regs_of(x)
    return o

def mfma(d, A, B, C):
    return I(f"v_mfma_f32_16x16x32_bf16 {d}, {A}, {B}, {txt(C)}", 'M', flat(A, B, C), flat(d), srcc=flat(C))
TRANS = ('v_exp_f32', 'v_rcp_f32', 'v_rsq_f32', 'v_sqrt_f32', 'v_log_f32')
def valu(op, d, *src, mods=""):
    cls = 'T' if op in TRANS else 'V'
    rd = flat(*src); wr = flat(d)
    sub = None
    if op.startswith('v_dot2'): sub = 'dot'
    if op in ('v_fmac_f32',): rd += flat(d)
    if op in ('v_readfirstlane_b32', 'v_readlane_b32'): sub = 'readlane'
    if op == 'v_writelane_b32': rd += flat(d)
    if op.startswith('v_cndmask') and len(src) == 2:
        rd += VCC.regs
        return I(f"{op} {d}, " + ", ".join(txt(x) for x in src) + ", vcc", cls, rd, wr)
    return I(f"{op} {d}, " + ", ".join(txt(x) for x in src) + (" " + mods if mods else ""), cls, rd, wr, sub=sub)
def swap16(x, y): return I(f"v_permlane16_swap_b32 {x}, {y}", 'P', flat(x, y), flat(x, y))
def swap32(x, y): return I(f"v_permlane32_swap_b32 {x}, {y}", 'P', flat(x, y), flat(x, y))
def salu(op, d, *src):
    wr = flat(d); rd = flat(*src)
    if op not in ('s_mov_b32', 's_mov_b64', 's_movk_i32', 's_mul_i32', 's_mul_hi_u32', 's_cselect_b32', 's_getpc_b64'): wr = wr + [SCC]
    if op in ('s_cselect_b32', 's_addc_u32'): rd = rd + [SCC]
    return I(f"{op} {d}" + "".join(", " + txt(x) for x in src), 'S', rd, wr)
def scmp(op, x, y): return I(f"{op} {txt(x)}, {txt(y)}", 'S', flat(x, y), [SCC])
def ds_read(op, d, addr, off=0, tok=()):
    assert 0 <= off < 65536, off
    return I(f"{op} {d}, {addr}" + (f" offset:{off}" if off else ""), 'D', flat(addr), flat(d), lrd=list(tok))
def ds_write(op, addr, data, off=0, tok=()):
    assert 0 <= off < 65536, off
    return I(f"{op} {addr}, {data}" + (f" offset:{off}" if off else ""), 'W', flat(addr, data), [], lwr=list(tok))
def dma(voff, srd, soff, off=0, tok=(), mods=""):
    assert 0 <= off < 4096
    return I(f"buffer_load_dwordx4 {voff}, {srd}, {txt(soff)} offen" + (f" offset:{off}" if off else "") + (" " + mods if mods else "") + " lds", 'G',
             flat(voff, srd, soff, M0), [], lwr=list(tok), sub='dma')
def bload(op, d, voff, srd, soff, off=0, mods=""):
    assert 0 <= off < 4096
    return I(f"{op} {d}, {voff}, {srd}, {txt(soff)} offen" + (f" offset:{off}" if off else "") + (" " + mods if mods else ""), 'G',
             flat(voff, srd, soff), flat(d), sub='load')
def bstore(op, data, voff, srd, soff, off=0, mods="", tok=()):
    assert 0 <= off < 4096
    return I(f"{op} {data}, {voff}, {srd}, {txt(soff)} offen" + (f" offset:{off}" if off else "") + (" " + mods if mods else ""), 'G',
             flat(data, voff, srd, soff), [], sub='store', data=flat(data), lwr=list(tok))
def barrier(need=(), free=()):
    i = I("s_barrier", 'B'); i.need = list(need); i.free = list(free); return i
def sload(op, d, base, off): return I(f"{op} {d}, {base}, {hex(off)}", 'X', flat(base), flat(d))
def label(n): return I(f"{n}:", 'L')
def branch(op, n):
    rd = [SCC] if 'scc' in op else (VCC.regs if 'vcc' in op else [])
    return I(f"{op} {n}", 'J', rd, [])
def raw(text, cls='S', rd=(), wr=()): return I(text, cls, flat(*rd), flat(*wr))
def waitall():
    i = I("s_waitcnt vmcnt(0) lgkmcnt(0)", 'S'); i.sub = 'waitall'; return i
def waitvm(n):
    i = I(f"s_waitcnt vmcnt({n})", 'S'); i.sub = 'waitvm'; i.n = n; return i

class Timeline:
    def __init__(s, cyclic=False):
        s.m = []; s.gap = []; s.sh = []; s.cyclic = cyclic; s.flex = []
    def add(s, m):
        s.m.append(m); s.gap.append([]); s.sh.append([]); return len(s.m) - 1
    def n(s): return len(s.m)
    COST = {'V': 1, 'T': 2, 'P': 2, 'D': 1, 'G': 2, 'W': 2, 'B': 2}
    def used(s, g): return sum(s.COST[i.cls] for i in s.gap[g])
    def fits(s, g, cls):
        if s.used(g) + s.COST[cls] > 2: return False
        if cls == 'D' and any(i.cls == 'D' for i in s.gap[g]): return False
        return True
    def put(s, g, ins):
        gg = g % s.n() if s.cyclic else g
        if ins.cls == 'S': s.sh[gg].append(ins)
        elif ins.cls in 'DGWB' and not any(i.cls in 'DGWB' for i in s.gap[gg]) and not getattr(ins, 'keep_order', False):
            s.gap[gg].insert(0, ins)
        else: s.gap[gg].append(ins)
        ins.at = g
        return g
    def place(s, g0, ins, deadline=None, step=1):
        lim = deadline if deadline is not None else (g0 + s.n() - 1 if s.cyclic else s.n() - 1)
        g = g0
        while g <= lim:
            gg = g % s.n() if s.cyclic else g
            if ins.cls == 'S':
                if not s.sh[gg] and not any(i.cls == 'G' for i in s.gap[gg]): return s.put(g, ins)
            elif s.fits(gg, ins.cls): return s.put(g, ins)
            g += step
        best = min(range(g0, max(lim, g0) + 1), key=lambda x: (s.used(x % s.n() if s.cyclic else x) + 3*len(s.sh[x % s.n() if s.cyclic else x]) * (ins.cls == 'S'), x))
        return s.put(best, ins)
    def emit(s, g0=0, g1=None):
        out = []
        for g in range(g0, s.n() if g1 is None else g1):
            out.append(s.m[g]); out += s.sh[g]; out += s.gap[g]
        return out
    def overflow(s):
        return sum(max(0, s.used(g) - 2) for g in range(s.n()))

def insert_waits(path, hoist=True):
    changed = False
    vm = []; lg = []
    smem = []
    last_m = None
    nvm = 0; nlg = 0
    shadows = []
    for idx, ins in enumerate(path):
        if idx > 0 and path[idx - 1].cls == 'M':
            shadows.append((ins, nvm, nlg, idx)); del shadows[:-3]
        if ins.cls in 'LJB' and not (ins.cls == 'B'): shadows.clear()
        def apply(w):
            if 'vm' in w:
                while len(vm) > w['vm']: vm.pop(0)
            if 'lgkm' in w:
                if w['lgkm'] == 0: smem.clear()
                while len(lg) > w['lgkm']: lg.pop(0)
        apply(ins.pre_wait)
        rd = set(ins.rd); wr = set(ins.wr)
        lrd = set(ins.lrd) | set(getattr(ins, 'need', [])); lwr = set(ins.lwr) | set(getattr(ins, 'free', []))
        def conflict(p, q):
            if set(p.wr) & (rd | wr): return True
            if q == 'lg' and ins.cls in 'DW': return False
            if set(p.lwr) & (lrd | (lwr if ins.cls != 'B' and ins.sub != 'dma' else set())): return True
            if set(p.lrd) & lwr: return True
            return False
        for name, q, mx in (('vm', vm, 63), ('lgkm', lg, 15)):
            k = -1
            for j, (p, seq) in enumerate(q):
                if conflict(p, 'lg' if name == 'lgkm' else 'vm'): k = j
            if k >= 0:
                seq = q[k][1]
                tgt = ins; cnt = nvm if name == 'vm' else nlg
                if hoist:
                    for sh in reversed(shadows):
                        if idx - sh[3] > 8: break
                        if sh[0].cls == 'G': continue
                        c2 = sh[1] if name == 'vm' else sh[2]
                        if seq < c2: tgt = sh[0]; cnt = c2
                        break
                n = min(cnt - seq - 1, mx)
                if name == 'lgkm' and smem: n = 0
                if tgt.pre_wait.get(name, 99) > n:
                    tgt.pre_wait[name] = n; changed = True
                del q[:k + 1]
        if any(set(p.wr) & (rd | wr) for p in smem):
            if ins.pre_wait.get('lgkm', 99) > 0:
                ins.pre_wait['lgkm'] = 0; changed = True
            smem.clear(); lg.clear()
        if ins.sub == 'waitall': vm.clear(); lg.clear(); smem.clear()
        if ins.sub == 'waitvm':
            while len(vm) > ins.n: vm.pop(0)
        if ins.cls == 'G': vm.append((ins, nvm)); nvm += 1
        if ins.cls in 'DW': lg.append((ins, nlg)); nlg += 1
        if ins.cls == 'X': smem.append(ins)
    return changed

def hazard_need(p, c):
    pw = set(p.wr); need = 0
    VALU = 'VTP'
    crd = set(c.rd); cwr = set(c.wr)
    if p.cls in VALU:
        vw = {r for r in pw if r[0] in 'va'}; sw = {r for r in pw if r[0] == 's'}
        if c.cls == 'M' and vw & crd: need = max(need, 2)
        if c.cls == 'P' and vw & crd: need = max(need, 2)
        if c.sub == 'readlane' and vw & crd: need = max(need, 1)
        if p.cls == 'T' and c.cls in VALU + 'GDW' and vw & crd: need = max(need, 1)
        if p.sub == 'dot' and vw & (crd | cwr): need = max(need, 3)
        if sw & crd:
            if c.cls in VALU: need = max(need, 4)
            elif c.cls == 'G': need = max(need, 5)
            else: need = max(need, 2)
    if p.cls == 'M':
        if c.cls == 'M':
            ab = crd - set(c.srcc)
            if pw & ab: need = max(need, 8)
            if pw & set(c.srcc) and p.wr != c.srcc: need = max(need, 6)
            if pw & cwr and not (pw & set(c.srcc)): need = max(need, 6)
        elif pw & (crd | cwr): need = max(need, 8)
        if c.cls in VALU and set(p.srcc) & cwr: need = max(need, 3)
    if p.cls == 'S' and ('s', 'm0') in pw and (c.sub == 'dma' or ('s', 'm0') in crd and c.cls != 'S'): need = max(need, 1)
    if p.sub == 'store' and len(p.data) >= 3 and set(p.data) & cwr: need = max(need, 2)
    return need

def insert_nops(path):
    changed = False
    W = 10
    hist = []
    pos = 0
    for ins in path:
        if ins.cls == 'L': continue
        pos += (1 if ins.pre_wait else 0)
        base = pos
        need_pos = base + ins.pre_nop
        for p, pp in hist[-W:]:
            h = hazard_need(p, ins)
            if h and pp + 1 + h > need_pos: need_pos = pp + 1 + h
        if need_pos - base > ins.pre_nop:
            ins.pre_nop = need_pos - base; changed = True
        pos = base + ins.pre_nop
        hist.append((ins, pos))
        m = re.match(r"s_nop (\d+)", ins.text)
        pos += 1 + (int(m.group(1)) if m else 0)
    return changed

def finalize(paths):
    for _ in range(20):
        ch = False
        for p in paths: ch |= insert_waits(p)
        if not ch: break
    else: raise RuntimeError("waits do not converge")
    for _ in range(20):
        ch = False
        for p in paths: ch |= insert_nops(p)
        if not ch: break

def render(seq):
    out = []
    for i in seq:
        if i.pre_wait:
            w = " ".join(f"{'vmcnt' if k == 'vm' else 'lgkmcnt'}({n})" for k, n in sorted(i.pre_wait.items(), reverse=True))
            out.append(f"  s_waitcnt {w}")
        n = i.pre_nop
        while n > 0:
            k = min(n, 16); out.append(f"  s_nop {k-1}"); n -= k
        out.append(i.text if i.cls == 'L' else "  " + i.text + (f"  ; {i.comment}" if i.comment else ""))
    return out

def tagw(ins, tag):
    ins.wtag = tag; return ins
def tagr(ins, regs, tag):
    if not hasattr(ins, 'rtag'): ins.rtag = []
    ins.rtag.append((regs.regs, tag)); return ins
def check_tags(path):
    cur = {}; bad = 0
    for k, ins in enumerate(path):
        for regs, tag in getattr(ins, 'rtag', []):
            for r in regs:
                if cur.get(r) != tag:
                    bad += 1
                    if bad < 10: print("TAG MISMATCH at", k, ins.text, r, "has", cur.get(r), "wants", tag)
                    break
        t = getattr(ins, 'wtag', None)
        for r in ins.wr: cur[r] = t
        for tok in ins.lwr: cur[tok] = t
        for tok in ins.lrd:
            w = getattr(ins, 'ltag', None)
            if w is not None and cur.get(tok) != w:
                bad += 1
                if bad < 10: print("LDS TAG MISMATCH at", k, ins.text, tok, "has", cur.get(tok), "wants", w)
    assert not bad, bad
```

```python
import sys, math
from asmlib import *

NAME = "recurrent_scan__gqa_block_cached__dense_activation_gelu__prompt"
CQ = math.log2(math.e) / math.sqrt(128.0)
KG = math.sqrt(2.0 / math.pi)
ALPHA = -math.log2(math.e) * 2 * KG / CQ
BETA = ALPHA * 0.044715 / (CQ * CQ)

class Cfg:
    msum_qb = (1, 3)
    e0 = 37
    bar_gap = 104
    pat = 'D' * 8 + 'G.D' * 8 + 'D' * 32
    force_slow = False
    stamps = False
    pretouch = True
cfg = Cfg()

sW, sG, sQB = s(3), s(30), s(31)
SRD_X, SRD_K, SRD_V, SRD_WQ, SRD_W1, SRD_W2, SRD_WO, SRD_WS, SRD_B1 = (s(32 + 4 * i, 4) for i in range(9))
sT0, sT1, sT2, sT3 = s(68), s(69), s(70), s(71)
sSTG = s(72)
sSO = [s(73), s(74)]
sODD = s(75)
sHS = [s(76 + i) for i in range(4)]
sBETA, sCQ = s(80), s(81)
sPB = s(82)
sKO, sVO = s(83), s(84)
sKM0 = s(85)
sIT = s(86)
sSLOW = s(87)
sW2B, sWOB = s(88), s(89)
sST = [s(90), s(91)]
sLO, sHI = s(92), s(93)
sKV0 = s(94)
vTID = v(0); vL16 = v(1)
vTRA = [v(2 + i) for i in range(4)]
vOW1 = [v(6 + i) for i in range(4)]
vOWQ = [v(10 + i) for i in range(4)]
vKA = [v(14 + i) for i in range(4)]
vVA = [v(18 + i) for i in range(8)]
vOK, vOV = v(26), v(27)
vOL = [v(28 + i) for i in range(4)]
QB, SB, PB, NEGM = 32, 96, 160, 224
vTRF = [v(240 + i) for i in range(4)]; vBF = [v(244), v(245)]
vHW = v(246); vDUM = v(247)
vALPHA = v(248)
LSUM, ONES, LADD = 240, 248, 252
def Q(qb, st): return v(QB + 16 * qb + 4 * st, 4)
def S(kb, qb): return v(SB + 16 * kb + 4 * qb, 4)
def P(par, qb, kh): return v(PB + 32 * par + 8 * qb + 4 * kh, 4)
def O(i, qb): return a(16 * i + 4 * qb, 4)
def Kf(kb, st): return a(128 + 16 * kb + 4 * st, 4)
def Vf(i, kh): return a(192 + 8 * i + 4 * kh, 4)
def Af(par, b, kk): return a(192 + 32 * par + 8 * b + 4 * kk, 4)
def NM(qb): return v(NEGM + 4 * qb, 4)
L_V, L_K, L_STG = 0, 32768, 65536

def srd(dst, ptr, nbytes):
    return [salu('s_mov_b32', dst[0], ptr[0]), salu('s_mov_b32', dst[1], ptr[1]),
            salu('s_mov_b32', dst[2], nbytes), salu('s_mov_b32', dst[3], 0x20000)]

NSTAMP = [0]
def stamp(name):
    if not cfg.stamps: return []
    n = NSTAMP[0]; NSTAMP[0] += 1
    STAMPS.append(name)
    return [raw("s_memtime s[96:97]", 'X', [], [s(96, 2)]),
            raw(f"v_writelane_b32 v0, s96, {n}", 'V', [s(96), v(0)], [v(0)])]
STAMPS = []

class Stage:
    def __init__(st, kind, kp, ch, nkk=2):
        st.kind = kind; st.kp = kp; st.ch = ch; st.nkk = nkk

def stage_group(j, st, kk):
    slot = j % 3
    stride = {'w1': 3584, 'wq': 8192, 'w2': 1024, 'wo': 1024}[st.kind]
    srd_ = {'w1': SRD_W1, 'wq': SRD_WQ, 'w2': SRD_W2, 'wo': SRD_WO}[st.kind]
    vo = {'w1': vOW1, 'wq': vOWQ, 'w2': vOL, 'wo': vOL}[st.kind]
    so = sSO[kk]
    off = (64 * st.kp + 32 * kk) * stride + st.ch * 128
    if st.kind == 'w2': s1 = salu('s_add_u32', so, sW2B, off)
    elif st.kind == 'wo': s1 = salu('s_add_u32', so, sWOB, off)
    else: s1 = salu('s_mov_b32', so, off)
    s2 = salu('s_add_u32', M0, sSTG, slot * 8192 + kk * 4096)
    d = [dma(vo[u], srd_, so, u * 1024, tok=[('stg', slot, 2 * kk + u // 2)]) for u in range(4)]
    tagw(s1, (st.kind, j, kk)); tagw(s2, (st.kind, j, kk))
    for u in range(4):
        tagw(d[u], (st.kind, j, u % 2)); tagr(d[u], so, (st.kind, j, kk)); tagr(d[u], M0, (st.kind, j, kk))
    return [s1, s2], d

def stage_reads(j, st, gamma):
    slot = j % 3; kk, e = gamma // 2, gamma % 2
    ad = vTRF if st.kind == 'w1' else vTRA
    r = [ds_read('ds_read_b64_tr_b16', Af(j % 2, b, kk)[2 * e:2 * e + 2], ad[b], slot * 8192 + gamma * 2048, tok=[('stg', slot, gamma)])
         for b in range(4)]
    for i in r: tagw(i, ('A', st.kind, j)); i.ltag = (st.kind, j, 1)
    return r

def kv_group(which, slot):
    if which == 'K': so, vo, sr, base = sKO, vOK, SRD_K, L_K
    else: so, vo, sr, base = sVO, vOV, SRD_V, L_V
    sc = [salu('s_add_u32', so, so, 16384), salu('s_and_b32', so, so, 0x7ffff),
          salu('s_add_u32', M0, sKM0, base + slot * 16384)]
    d = [dma(vo, sr, so, u * 1024, tok=[(which, slot)]) for u in range(4)]
    tagw(sc[1], (which, slot)); tagw(sc[2], (which, slot))
    for i in d: tagr(i, so, (which, slot)); tagr(i, M0, (which, slot))
    return sc, d

class Sched:
    def __init__(z, tl):
        z.tl = tl; z.lastD = -1; z.lastG = -2; z.flex = []; tl.busy_sh = set()
    def D(z, lo, ins, dl=None):
        lo = max(lo, z.lastD + 1, 0)
        z.lastD = z.tl.place(lo, ins, deadline=None if dl is None else max(dl, lo)); return z.lastD
    def group(z, sc, dd, los, step=2):
        prev = z.lastG
        first = None
        for k, ins in enumerate(dd):
            lo = max(los[k] if isinstance(los, list) else los, z.lastG + (step if k else max(step, 1 + len(sc))), 1)
            z.lastG = z.tl.place(lo, ins, deadline=lo + 5)
            if first is None: first = z.lastG
        z.flex.append((sc, prev + 1, first - 1))
        return z.lastG

def place_ring(tl, z, stages, starts, blk_end, extra, kvx={}):
    NS = len(stages)
    def base(j, gamma):
        while gamma >= 4 and j + 1 < NS: j += 1; gamma -= 4
        return starts[j] + (gamma * (starts[j + 1] - starts[j])) // 4 - 4
    for j in range(NS):
        f = j + 4
        for kk in range(2):
            if f < NS and kk < stages[f].nkk:
                sc, dd = stage_group(f, stages[f], kk)
                los = []
                for gamma in (2 * kk, 2 * kk + 1):
                    b0, b1 = base(j, gamma + 1), base(j, gamma + 2)
                    los += [b0 + 3, b0 + 3 + (b1 - b0) // 2]
                z.group(sc, dd, los)
            for which, slot, lo in kvx.get((j, kk), []):
                sc, dd = kv_group(which, slot); z.group(sc, dd, lo)
    for j in range(NS):
        r = j + 1; ex = extra.get(j, []); nex = len(ex)
        for gamma in range(4):
            rds = stage_reads(r, stages[r], gamma) if r < NS and gamma < 2 * stages[r].nkk else []
            lst = [(ins, blk_end.get((j - 1, b), 0)) for b, ins in enumerate(rds)]
            lst += [(i, max(lo, starts[j] - 1)) for i, lo in ex[(gamma * nex) // 4:((gamma + 1) * nex) // 4]]
            b1 = base(j, gamma + 1) if not (j == NS - 1 and gamma == 3) else starts[NS] - 4
            av = [g for g in range(max(base(j, gamma), 0), b1) if tl.used(g) == 0]
            for k, (ins, lo) in enumerate(lst):
                g = av[(k * len(av)) // len(lst)]
                if g < lo:
                    c = [x for x in av if x >= lo]
                    g = min(c, key=lambda x: (tl.used(x), x)) if c else lo
                tl.put(g, ins); z.lastD = max(z.lastD, g)

def place_flex(tl, flex):
    def wrap(g): return g % tl.n() if tl.cyclic else g
    for sc, lo, hi in flex:
        lo = max(lo, 0)
        assert hi >= lo, (sc, lo, hi)
        cand = [g for g in range(lo, hi + 1) if not any(i.cls == 'G' for i in tl.gap[wrap(g)])]
        assert cand, (sc, lo, hi)
        def load(g):
            k = len(tl.sh[wrap(g)]) + (wrap(g) in tl.busy_sh)
            return max(0, k + 1 + tl.used(wrap(g)) - 3) if k else 0
        pick = sorted(sorted(cand, key=lambda g: (load(g), -g))[:len(sc)])
        while len(pick) < len(sc): pick.append(pick[-1])
        for ins, g in zip(sc, pick): tl.put(g, ins)

def mark_busy(tl):
    tl.busy_sh = set()
    for g in range(tl.n()):
        nxt = tl.sh[g] + tl.gap[g] + ([tl.m[g + 1]] if g + 1 < tl.n() else [])
        if nxt and nxt[0].pre_wait: tl.busy_sh.add(g)

def k1_prologue():
    o = []; A = o.append; E = o.extend
    A(scmp('s_cmp_ge_u32', s(2), 256)); A(branch('s_cbranch_scc1', 'L_end'))
    A(sload('s_load_dwordx16', s(4, 16), s(0, 2), 0))
    A(sload('s_load_dwordx8', s(20, 8), s(0, 2), 64))
    A(sload('s_load_dwordx2', s(28, 2), s(0, 2), 96))
    vl, vc, vt, vx = v(232), v(233), v(234), v(235)
    t0, t1, t2, t3 = v(236), v(237), v(238), v(239)
    A(valu('v_lshrrev_b32', t0, 6, vTID))
    A(valu('v_and_b32', vl, 63, vTID))
    A(valu('v_readfirstlane_b32', sW, t0))
    A(valu('v_and_b32', vc, 15, vl)); A(valu('v_lshrrev_b32', vt, 4, vl))
    A(valu('v_lshlrev_b32', vL16, 4, vl))
    A(salu('s_and_b32', sG, s(2), 7)); A(salu('s_lshr_b32', sQB, s(2), 3))
    A(salu('s_lshl_b32', sT0, sQB, 16)); A(salu('s_lshl_b32', sT1, sW, 14)); A(salu('s_add_u32', sT0, sT0, sT1))
    A(valu('v_lshlrev_b32', vx, 10, vc)); A(valu('v_lshl_add_u32', vx, vt, 4, vx))
    rr, sc_ = v(228), v(229)
    A(valu('v_lshrrev_b32', rr, 3, vl))
    A(valu('v_and_b32', t0, 7, vl)); A(valu('v_lshlrev_b32', t1, 1, vt)); A(valu('v_xor_b32', sc_, t0, t1))
    A(valu('v_lshlrev_b32', sc_, 4, sc_))
    nat = v(230)
    A(valu('v_and_b32', t0, 4, rr)); A(valu('v_add_u32', nat, t0, rr))
    A(salu('s_and_b32', sODD, sW, 1))
    A(salu('s_mul_i32', sT1, sG, 448)); A(salu('s_lshr_b32', sT2, sW, 1)); A(salu('s_mul_i32', sT2, sT2, 224))
    A(salu('s_mul_i32', sT3, sODD, 96)); A(salu('s_add_u32', sT2, sT2, sT3)); A(salu('s_add_u32', sT1, sT1, sT2))
    A(valu('v_mul_u32_u24', t0, 3584, nat)); A(valu('v_add3_u32', t0, t0, sc_, sT1))
    rowoff = [0, 16, 4, 20]
    for u in range(4): A(valu('v_add_u32', vOW1[u], rowoff[u] * 3584 - u * 1024, t0))
    A(salu('s_mul_i32', sSTG, sW, 24576)); A(salu('s_add_u32', sSTG, sSTG, L_STG))
    E(srd(SRD_X, s(4, 2), 2048 * 512 * 2))
    for st_ in range(16): A(bload('buffer_load_dwordx4', v(QB + 4 * st_, 4), vx, SRD_X, sT0, st_ * 64))
    E(srd(SRD_W1, s(16, 2), 512 * 1792 * 2)); E(srd(SRD_WQ, s(10, 2), 512 * 4096 * 2))
    if cfg.pretouch:
        A(valu('v_lshrrev_b32', t1, 4, vTID)); A(valu('v_mul_u32_u24', t2, 3584, t1)); A(valu('v_lshl_add_u32', t2, vc, 5, t2))
        A(salu('s_mul_i32', sT2, sQB, 16 * 3584)); A(salu('s_mul_i32', sT3, sG, 448)); A(salu('s_add_u32', sT2, sT2, sT3))
        A(bload('buffer_load_dword', vDUM, t2, SRD_W1, sT2))
        A(valu('v_lshlrev_b32', t2, 13, t1)); A(valu('v_lshl_add_u32', t2, vc, 6, t2))
        A(salu('s_lshl_b32', sT2, sQB, 17)); A(salu('s_lshl_b32', sT3, sG, 10)); A(salu('s_add_u32', sT2, sT2, sT3))
        A(bload('buffer_load_dword', v(249), t2, SRD_WQ, sT2))
    return o, dict(vl=vl, vc=vc, vt=vt, rr=rr, sc=sc_, nat=nat, t=(t0, t1, t2, t3))

def k1_prologue2(x, stages):
    o = []; A = o.append; E = o.extend
    vl, vc, vt, rr, sc_, nat = x['vl'], x['vc'], x['vt'], x['rr'], x['sc'], x['nat']
    t0, t1, t2, t3 = x['t']
    for j in range(3):
        for kk in range(2):
            sc, dd = stage_group(j, stages[j], kk); E(sc); E(dd)
    E(srd(SRD_B1, s(18, 2), 1792 * 2))
    A(salu('s_lshr_b32', sT2, sW, 1)); A(salu('s_mul_i32', sT2, sT2, 7)); A(salu('s_mul_i32', sT3, sODD, 3)); A(salu('s_add_u32', sT2, sT2, sT3))
    lp, key = v(226), v(227)
    A(valu('v_lshrrev_b32', t0, 2, vl)); A(valu('v_lshlrev_b32', lp, 7, t0))
    A(valu('v_and_b32', t0, 3, vl)); A(valu('v_lshl_add_u32', lp, t0, 3, lp)); A(valu('v_add_u32', lp, sSTG, lp))
    A(valu('v_and_b32', key, 3, rr))
    A(valu('v_lshlrev_b32', t3, 3, vt))
    for b in range(4):
        A(valu('v_xor_b32', t0, b, key)); A(valu('v_lshl_add_u32', vTRA[b], t0, 5, lp))
        A(salu('s_add_u32', sT0, sODD, b)); A(salu('s_and_b32', sT0, sT0, 3))
        A(valu('v_xor_b32', t0, sT0, key)); A(valu('v_lshl_add_u32', vTRF[b], t0, 5, lp))
        A(salu('s_add_u32', sT0, sT0, sT2))
        A(salu('s_mul_i32', sT1, sG, 448)); A(salu('s_lshl_b32', sT3, sT0, 5)); A(salu('s_add_u32', sT1, sT1, sT3))
        A(bload('buffer_load_dwordx2', a(64 + 2 * b, 2), t3, SRD_B1, sT1))
        A(salu('s_lshr_b32', sT1, sT0, 1)); A(salu('s_lshl_b32', sT1, sT1, 12))
        A(salu('s_and_b32', sT3, sT0, 1)); A(salu('s_lshl_b32', sT3, sT3, 3)); A(salu('s_add_u32', sHS[b], sT1, sT3))
    A(salu('s_lshl_b32', sT0, sODD, 11)); A(valu('v_add_u32', vBF[0], sT0, vL16))
    A(salu('s_xor_b32', sT0, sT0, 2048)); A(valu('v_add_u32', vBF[1], sT0, vL16))
    A(salu('s_lshl_b32', sT1, sG, 10)); A(salu('s_lshl_b32', sT2, sW, 8)); A(salu('s_add_u32', sT1, sT1, sT2))
    A(valu('v_lshlrev_b32', t0, 13, nat)); A(valu('v_add3_u32', t0, t0, sc_, sT1))
    rowoff = [0, 16, 4, 20]
    for u in range(4): A(valu('v_add_u32', vOWQ[u], rowoff[u] * 8192 - u * 1024, t0))
    A(valu('v_lshlrev_b32', t0, 10, rr)); A(valu('v_add3_u32', t0, t0, sc_, sT2))
    for u in range(4): A(valu('v_add_u32', vOL[u], u * 7168, t0))
    A(salu('s_mul_i32', sW2B, sG, 224 * 1024)); A(salu('s_lshl_b32', sWOB, sG, 19))
    E(srd(SRD_K, s(6, 2), 8 * 2048 * 128 * 2)); E(srd(SRD_V, s(8, 2), 8 * 2048 * 128 * 2))
    E(srd(SRD_W2, s(20, 2), 1792 * 512 * 2)); E(srd(SRD_WO, s(12, 2), 4096 * 512 * 2))
    E(srd(SRD_WS, s(28, 2), 1 << 28))
    A(salu('s_lshl_b32', sKM0, sW, 12)); A(salu('s_add_u32', sT0, sWOB, sKM0))
    A(salu('s_lshl_b32', sT1, sW, 2)); A(valu('v_add_u32', t0, sT1, vt)); A(valu('v_xor_b32', t0, t0, vc))
    A(valu('v_lshlrev_b32', t1, 8, vt)); A(valu('v_lshl_add_u32', t0, t0, 4, t1)); A(valu('v_add_u32', vOK, sT0, t0))
    A(salu('s_lshl_b32', sT1, sODD, 2)); A(valu('v_add_u32', t0, sT1, vt)); A(valu('v_lshlrev_b32', t0, 1, t0)); A(valu('v_xor_b32', t0, t0, vc))
    A(valu('v_lshl_add_u32', t0, t0, 4, t1)); A(valu('v_add_u32', vOV, sT0, t0))
    A(valu('v_lshrrev_b32', t0, 2, vc)); A(valu('v_lshlrev_b32', t1, 12, t0))
    A(valu('v_and_b32', t2, 3, vc)); A(valu('v_lshl_add_u32', t1, t2, 8, t1)); A(valu('v_add_u32', t1, L_K, t1))
    A(valu('v_lshrrev_b32', t3, 1, vt)); A(valu('v_and_b32', key, 1, vt)); A(valu('v_lshl_add_u32', t3, key, 1, t3))
    A(valu('v_xor_b32', t3, t3, vc))
    for st_ in range(4):
        A(valu('v_xor_b32', lp, 4 * st_, t3)); A(valu('v_lshl_add_u32', vKA[st_], lp, 4, t1))
    A(valu('v_lshl_add_u32', t1, vt, 4, t0)); A(valu('v_lshlrev_b32', t1, 8, t1)); A(valu('v_lshl_add_u32', t1, t2, 3, t1))
    A(valu('v_lshl_add_u32', t3, key, 2, t0))
    for i in range(8):
        A(valu('v_xor_b32', lp, i, t3)); A(valu('v_lshl_add_u32', vVA[i], lp, 5, t1))
    A(salu('s_mov_b32', sBETA, BETA)); A(salu('s_mov_b32', sCQ, CQ))
    A(salu('s_lshl_b32', sPB, sG, 21)); A(salu('s_lshl_b32', sT0, sQB, 16)); A(salu('s_add_u32', sPB, sPB, sT0))
    A(salu('s_lshl_b32', sT0, sW, 14)); A(salu('s_add_u32', sPB, sPB, sT0))
    A(salu('s_lshl_b32', sKV0, sQB, 14)); A(salu('s_sub_u32', sKV0, sKV0, 16384))
    A(salu('s_mov_b32', sKO, sKV0)); A(salu('s_mov_b32', sVO, sKV0))
    A(salu('s_mov_b32', sSLOW, 0))
    A(salu('s_mov_b32', sLO, 0x00003f80)); A(salu('s_mov_b32', sHI, 0x3f800000))
    if cfg.pretouch:
        A(valu('v_mul_u32_u24', t0, 28, vTID)); A(salu('s_mul_i32', sT0, sQB, 7168)); A(salu('s_add_u32', sT0, sT0, sW2B))
        A(bload('buffer_load_dword', v(250), t0, SRD_W2, sT0))
        A(valu('v_lshlrev_b32', t0, 6, vTID)); A(salu('s_lshl_b32', sT0, sQB, 14)); A(salu('s_add_u32', sT0, sT0, sWOB))
        A(bload('buffer_load_dword', v(251), t0, SRD_K, sT0)); A(bload('buffer_load_dword', v(252), t0, SRD_V, sT0))
    E(stamp('setup'))
    one = v(224, 4); acc = v(228, 4)
    for r in range(4): A(valu('v_mov_b32', one[r], 0x3f803f80))
    for st_ in range(16): A(mfma(acc, one, v(QB + 4 * st_, 4), 0 if st_ == 0 else acc))
    nm = v(232)
    A(valu('v_mul_f32', nm, -1.0 / 512, acc[0]))
    E(stamp('x_in'))
    D0 = SB
    for k in range(64):
        A(valu('v_dot2_f32_bf16', v(D0 + 2 * k), v(QB + k), sLO, nm))
        A(valu('v_dot2_f32_bf16', v(D0 + 2 * k + 1), v(QB + k), sHI, nm))
    sq = [v(224, 2), v(226, 2), v(228, 2), v(230, 2)]
    for k in range(64):
        d = v(D0 + 2 * k, 2)
        if k < 4: A(valu('v_pk_mul_f32', sq[k], d, d))
        else: A(valu('v_pk_fma_f32', sq[k % 4], d, d, sq[k % 4]))
    A(valu('v_pk_add_f32', sq[0], sq[0], sq[1])); A(valu('v_pk_add_f32', sq[2], sq[2], sq[3])); A(valu('v_pk_add_f32', sq[0], sq[0], sq[2]))
    A(valu('v_add_f32', v(224), v(224), v(225)))
    A(valu('v_mov_b32', v(225), v(224))); A(swap32(v(224), v(225))); A(valu('v_add_f32', v(224), v(224), v(225)))
    A(valu('v_mov_b32', v(225), v(224))); A(swap16(v(224), v(225))); A(valu('v_add_f32', v(224), v(224), v(225)))
    A(valu('v_mov_b32', v(226), 1e-5)); A(valu('v_fmac_f32', v(226), 1.0 / 512, v(224)))
    A(valu('v_rsq_f32', v(226), v(226))); A(valu('v_mul_f32', v(226), sCQ, v(226))); A(valu('v_mov_b32', v(227), v(226)))
    A(salu('s_lshl_b32', sT0, sW, 10)); A(valu('v_add_u32', vHW, sT0, vL16))
    for st_ in range(16):
        for k in range(4 * st_, 4 * st_ + 4):
            A(valu('v_pk_mul_f32', v(D0 + 2 * k, 2), v(D0 + 2 * k, 2), v(226, 2)))
        for k in range(4 * st_, 4 * st_ + 4):
            A(valu('v_cvt_pk_bf16_f32', v(QB + k), v(D0 + 2 * k), v(D0 + 2 * k + 1)))
        A(ds_write('ds_write_b128', vHW, v(QB + 4 * st_, 4), st_ * 4096, tok=[('xq',)]))
    for g_ in range(4): E(stage_reads(0, stages[0], g_))
    tmp = [v(D0 + k) for k in range(8)]
    for k in range(8): A(valu('v_accvgpr_read_b32', tmp[k], a(64 + k)))
    for k in range(8):
        A(valu('v_lshlrev_b32', v(NEGM + 2 * k), 16, tmp[k])); A(valu('v_and_b32', v(NEGM + 2 * k + 1), 0xffff0000, tmp[k]))
    for k in range(16): A(valu('v_mul_f32', v(NEGM + k), sCQ, v(NEGM + k)))
    A(valu('v_mov_b32', vALPHA, ALPHA))
    A(barrier(need=[('xq',)]))
    E(stamp('ln_done'))
    return o

def Bx(kp, kk, qb): return a(32 * (kp % 2) + 16 * kk + 4 * qb, 4)
def Hf(st_, qb): return a({0: 0, 1: 16, 2: 64, 3: 80, 4: 96, 5: 112, 6: 32}[st_] + 4 * qb, 4)
def Hacc(b, qb): return v(SB + 16 * b + 4 * qb, 4)
def Qacc(i, qb): return Q(qb, i // 2) if i % 2 == 0 else v(PB + 16 * qb + 4 * (i // 2), 4)
def Zacc(ch, b, qb):
    if ch == 0: return v(SB + 32 * (b % 2) + 16 * (b // 2) + 4 * qb, 4)
    return v(PB + 32 * (1 - b % 2) + 16 * (b // 2) + 4 * qb, 4)

def pack_store(tl, z, acc, ch, ready, kind, dl=None):
    last = 0
    for bp in range(2):
        so = sST[bp]
        sc = tagw(salu('s_add_u32', so, sPB, kind * (1 << 24) + (ch * 8 + bp * 4) * 1024), (kind, ch, bp))
        first = None
        for qb in range(4):
            e, o_ = acc(ch, 2 * bp, qb), acc(ch, 2 * bp + 1, qb)
            g = max(ready(2 * bp, qb), last)
            tg = ('acc', 'w2' if kind else 'wo')
            def cv(d, src, k): return tagw(tagr(valu('v_cvt_pk_bf16_f32', d, src[k], src[k + 1]), src[k:k + 2], tg), 'pk')
            g = tl.place(g, cv(e[0], e, 0), dl)
            g = tl.place(g, cv(e[1], e, 2), dl)
            g = max(g, ready(2 * bp + 1, qb))
            g = tl.place(g, cv(e[2], o_, 0), dl)
            last = g = tl.place(g, cv(e[3], o_, 2), dl)
            g = tl.place(g + 1, tagr(tagr(bstore('buffer_store_dwordx4', e, vL16, SRD_WS, so, qb * 1024), e, 'pk'), so, (kind, ch, bp)), None if dl is None else dl + 8)
            if first is None: first = g
        z.flex.append(([sc], max(first - 6, 0), first - 1))
    return last

def y_order():
    ms = [('m', qb, kh) for qb in cfg.msum_qb for kh in range(2)]
    pv = [('p', i, qb, kh) for i in range(8) for qb in range(4) for kh in range(2)]
    return ms + pv
def x_mfmas(par=None):
    o = []
    for kb in range(4):
        for qb in range(4):
            for st_ in range(4):
                m_ = mfma(S(kb, qb), Kf(kb, st_), Q(qb, st_), NM(qb) if st_ == 0 else S(kb, qb))
                if par is not None:
                    tagr(m_, Kf(kb, st_), ('Kf', 1 - par)); tagr(m_, Q(qb, st_), 'Q'); tagw(m_, ('S', par, st_))
                    if st_: tagr(m_, S(kb, qb), ('S', par, st_ - 1))
                o.append(m_)
    return o
def y_mfma(y, par, first):
    if y[0] == 'm':
        _, qb, kh = y; acc = v(LSUM + 4 * cfg.msum_qb.index(qb), 4)
        return mfma(acc, v(ONES, 4), P(par, qb, kh), 0 if first and kh == 0 else acc)
    _, i, qb, kh = y
    return tagr(tagr(mfma(O(i, qb), Vf(i, kh), P(par, qb, kh), 0 if first and kh == 0 else O(i, qb)), Vf(i, kh), ('Vf', par)), P(par, qb, kh), 'P')
ADDQ = None
def item(kind, idx, par):
    if kind == 'bar': return barrier(need=[('K', par), ('V', 1 - par)], free=[('K', 1 - par), ('V', par)])
    if kind == 'exp':
        kb, qb, r = idx; return tagw(tagr(valu('v_exp_f32', S(kb, qb)[r], S(kb, qb)[r]), S(kb, qb)[r], ('S', par, 3)), ('E', par))
    if kind == 'add':
        kb, qb, r = idx; l = v(LADD + 2 * ADDQ.index(qb) + r % 2); return tagr(valu('v_add_f32', l, S(kb, qb)[r], l), S(kb, qb)[r], ('E', par))
    if kind == 'cvt':
        kb, qb, h = idx
        return tagw(tagr(valu('v_cvt_pk_bf16_f32', P(1 - par, qb, kb // 2)[2 * (kb % 2) + h], S(kb, qb)[2 * h], S(kb, qb)[2 * h + 1]), S(kb, qb)[2 * h:2 * h + 2], ('E', par)), 'P')
    if kind == 'kr':
        kb, st_ = idx; return tagw(ds_read('ds_read_b128', Kf(kb, st_), vKA[st_], par * 16384 + kb * 1024, tok=[('K', par)]), ('Kf', par))
    if kind == 'vr':
        i, kh, e = idx
        return tagw(ds_read('ds_read_b64_tr_b16', Vf(i, kh)[2 * e:2 * e + 2], vVA[i], (1 - par) * 16384 + (8 * kh + 4 * e) * 256, tok=[('V', 1 - par)]), ('Vf', 1 - par))
    if kind == 'kd': return kv_group('K', 1 - par)[1][idx]
    if kind == 'vd': return kv_group('V', par)[1][idx]
    if kind == 'ks': return kv_group('K', 1 - par)[0][idx]
    if kind == 'vs': return kv_group('V', par)[0][idx]
    raise KeyError(kind)

def steady_schedule(busy=()):
    global ADDQ
    ADDQ = [q for q in range(4) if q not in cfg.msum_qb]
    tl = Timeline(cyclic=True)
    for m in x_mfmas(): tl.add(m)
    for y in y_order(): tl.add(y_mfma(y, 0, False))
    N = tl.n(); items = []
    def pl(g, kind, idx, dl=None):
        g = tl.place(g, item(kind, idx, 0), dl); items.append((g, kind, idx)); return g
    ex = [(kb, qb, r) for kb in range(4) for qb in range(4) for r in range(4)]
    eg = {}
    for k, e in enumerate(ex): eg[e] = pl(cfg.e0 + (k * N) // 64, 'exp', e)
    B = pl(cfg.bar_gap, 'bar', 0)
    nm_ = 2 * len(cfg.msum_qb)
    rd = [('kr', (kb, st_)) for kb in range(4) for st_ in range(4)] + [('vr', (i, kh, e)) for i in range(8) for kh in range(2) for e in range(2)]
    dm = [('kd', u) for u in range(4)] + [('vd', u) for u in range(4)]
    free = [g for g in range(B + 1, B + N) if tl.used(g % N) == 0]
    nfree = len(free) - 56
    pat = cfg.pat
    assert pat.count('D') == 48 and pat.count('G') == 8 and len(pat) <= len(free), (pat.count('D'), pat.count('G'), len(pat), len(free))
    gk = []; gv = []
    for g, ch in zip(free, pat):
        if ch == 'D':
            kind, idx = rd.pop(0); pl(g, kind, idx); last = g
            if kind == 'kr': assert g <= N + 16 * idx[0] - 5, (idx, g)
            else: assert 64 + nm_ + 8 * idx[0] + 8 <= g <= N + 64 + 8 * idx[0], (idx, g)
        elif ch == 'G':
            kind, idx = dm.pop(0); pl(g, kind, idx); (gk if kind == 'kd' else gv).append(g)
    assert last < B + N - 3, last
    vs = []
    for (kb, qb, r) in ex:
        if r % 2: vs.append((eg[(kb, qb, r)] + 1, 'cvt', (kb, qb, r // 2)))
        if qb in ADDQ: vs.append((eg[(kb, qb, r)] + 1, 'add', (kb, qb, r)))
    cap = [2 - tl.used(g) for g in range(N)]
    assert sum(cap) >= len(vs), (sum(cap), len(vs))
    fifo = []; asg = {}
    allv = sorted([(g0 + p_ * N, p_, k) for p_ in range(5) for k, (g0, _, _) in enumerate(vs)])
    ptr = 0
    for t in range(7 * N):
        while ptr < len(allv) and allv[ptr][0] <= t: fifo.append(allv[ptr]); ptr += 1
        for _ in range(cap[t % N]):
            if fifo:
                _, p_, k = fifo.pop(0); asg[(p_, k)] = t - p_ * N
    for k, (g0, kind, idx) in enumerate(vs):
        g = asg[(3, k)]; assert g == asg[(2, k)]
        tl.put(g, item(kind, idx, 0)); items.append((g, kind, idx))
        assert g < N + 16 * idx[0] + 4 * idx[1] - 1 and g < N + 62, (kind, idx, g)
    tl.busy_sh = set(busy)
    def plsc(kind, n, lo, hi):
        ins = [item(kind, k, 0) for k in range(n)]
        place_flex(tl, [(ins, lo, hi)])
        for k, i in enumerate(ins): items.append((i.at, kind, k))
    plsc('ks', 3, gk[0] - 12, gk[0] - 1)
    plsc('vs', 3, gk[3] + 1, gv[0] - 1)
    return N, items, tl.overflow()

def add_iter(tl, N, items, par, first=False, skip_own=(), skip_late=()):
    g0 = tl.n()
    for m in x_mfmas(par): tl.add(m)
    for y in y_order(): tl.add(y_mfma(y, par, first))
    for g, kind, idx in items:
        if g >= N and kind not in skip_late: tl.put(g0 + g - N, item(kind, idx, 1 - par))
    for g, kind, idx in items:
        if g < N and kind not in skip_own: tl.put(g0 + g, item(kind, idx, par))
    return g0

def attn_init():
    o = [valu('v_mov_b32', v(LADD + k), 0) for k in range(4)]
    return o
def ones_init():
    t = v(ONES)
    return [valu('v_and_b32', t, 0x30, vL16), raw(f"v_cmp_eq_u32 vcc, 0, {t}", 'V', [t], [VCC]),
            valu('v_mov_b32', v(ONES + 1), 0x3f803f80), valu('v_cndmask_b32', t, 0, v(ONES + 1))] + \
           [valu('v_mov_b32', v(ONES + k), t) for k in range(1, 4)]

def add_xm1(tl, z, N, items, vlo=0):
    g0 = tl.n()
    for m in x_mfmas(1): tl.add(m)
    return g0
def fill_xm1(tl, z, g0, N, items, cvt_lo):
    B = [g for g, k, i in items if k == 'bar'][0]
    sh = g0 + 64 - N
    own = sorted([it for it in items if it[0] < N], key=lambda t: t[0])
    end = g0 + 63
    gb = tl.place(B + sh, item('bar', 0, 1), B + sh + 2)
    lastG = gb; pend = {'ks': [], 'vs': []}
    for g, kind, idx in own:
        if kind in ('kd', 'vd'):
            lo = max(g + sh, lastG + (4 if idx == 0 else 2))
            gg = tl.place(lo, item(kind, idx, 1), min(lo + 3, end))
            if idx == 0:
                k2 = kind[0] + 's'
                z.flex.append(([item(k2, k, 1) for k in range(3)], max(lastG, z.lastG) + 1, gg - 1))
            lastG = gg
    for k2 in ('ks', 'vs'):
        early = [idx for g, kind, idx in own if kind == k2]
        if early and not any(kind == k2[0] + 'd' and idx == 0 for g, kind, idx in own):
            z.flex.append(([item(k2, k, 1) for k in sorted(early)], lastG + 1, end))
        elif any(kind == k2[0] + 'd' and idx == 0 for g, kind, idx in own): assert len(early) == 3
    z.lastD = max(z.lastD, gb)
    for g, kind, idx in own:
        if kind == 'kr':
            z.D(max(g + sh, g0 + 16 * idx[0] + 16), item(kind, idx, 1), end)
        assert kind != 'vr'
    eg = {}; last = g0
    for g, kind, idx in own:
        if kind == 'exp':
            lo = max(g0 + 16 * idx[0] + 4 * idx[1] + 7, last)
            last = eg[idx] = tl.place(min(lo, end - 1), item(kind, idx, 1), end - 1)
    for g, kind, idx in own:
        if kind == 'add': tl.place(eg[idx] + 1, item(kind, idx, 1), end)
        if kind == 'cvt': tl.place(max(eg[(idx[0], idx[1], 2 * idx[2] + 1)] + 1, cvt_lo), item(kind, idx, 1), end)

def build_k1():
    stages = {}
    j = 0
    for kp in range(8): stages[j] = Stage('w1', kp, 0); j += 1
    for kp in range(8):
        for ch in range(2): stages[j] = Stage('wq', kp, ch); j += 1
    for ch in range(2):
        for kp in range(4): stages[j] = Stage('w2', kp, ch, 2 if kp < 3 else 1); j += 1
    NS1 = j
    pro1, x = k1_prologue()
    pro2 = k1_prologue2(x, stages)

    N, items, ovf = steady_schedule()
    tl = Timeline(); z = Sched(tl)
    starts = {}; blk_end = {}; done = {}
    for j in range(NS1):
        st = stages[j]; starts[j] = tl.n()
        for b in range(4):
            for qb in range(4):
                if st.kind == 'w1' and b == 3 and qb >= 2: continue
                for kk in range(st.nkk):
                    first = st.kp == 0 and kk == 0
                    if st.kind == 'w1': d = Hacc(b, qb); B_ = Bx(st.kp, kk, qb); c = NM(b) if first else d
                    elif st.kind == 'wq': d = Qacc(4 * st.ch + b, qb); B_ = Bx(st.kp, kk, qb); c = 0 if first else d
                    else: d = Zacc(st.ch, b, qb); B_ = Hf(2 * st.kp + kk, qb); c = 0 if first else d
                    m_ = mfma(d, Af(j % 2, b, kk), B_, c)
                    tagr(m_, Af(j % 2, b, kk), ('A', st.kind, j)); tagr(m_, B_, ('B', st.kind, 2 * st.kp + kk))
                    tagw(m_, ('acc', st.kind))
                    if not first: tagr(m_, d, ('acc', st.kind))
                    g = tl.add(m_)
                done[(st.kind, st.ch, b, qb)] = g
            blk_end[(j, b)] = tl.n() - 1
    starts[NS1] = tl.n()
    gX = add_xm1(tl, z, N, items)
    gBm = starts[8 + 8] + 6
    gBq = starts[8 + 14] + 8
    gB2 = starts[NS1] - 56
    tl.put(gBm, barrier(free=[('xq',)]))
    tl.put(gBq, barrier(need=[('H',)], free=[('xq',)]))
    tl.put(gB2, barrier(need=[('K', 0)], free=[('H',)]))
    pre = []
    def bread(kind, kp, kk, qb):
        st_ = 2 * kp + kk
        if kind == 'w1': return tagw(ds_read('ds_read_b128', Bx(kp, kk, qb), vBF[qb // 2], st_ * 4096 + (qb % 2) * 1024, tok=[('xq',)]), ('B', kind, st_))
        return tagw(ds_read('ds_read_b128', Bx(kp, kk, qb), vL16, st_ * 4096 + qb * 1024, tok=[('xq',)]), ('B', kind, st_))
    for qb in range(4):
        for kk in range(2): pre.append(bread('w1', 0, kk, qb))
    for kk in range(2):
        sc, dd = stage_group(3, stages[3], kk); pre += sc + dd
    extra = {j: [] for j in range(NS1)}
    for j in range(7): extra[j] = [(bread('w1', j + 1, kk, qb), 0) for qb in range(4) for kk in range(2)]
    extra[7] = [(bread('wq', 0, kk, qb), 0) for qb in range(4) for kk in range(2)]
    for kp in range(7):
        rs = [(bread('wq', kp + 1, kk, qb), 0) for qb in range(4) for kk in range(2)]
        extra[8 + 2 * kp] = rs[:4]; extra[9 + 2 * kp] = rs[4:]
    def hread(st_, qb): return tagw(ds_read('ds_read_b128', Hf(st_, qb), vL16, st_ * 4096 + qb * 1024, tok=[('H',)]), ('B', 'w2', st_))
    hr = [(hread(2 * kp + kk, qb), gBq + 1) for kp in range(3) for qb in range(4) for kk in range(2)] + [(hread(6, qb), starts[24]) for qb in range(4)]
    extra[22] = hr[:3]; extra[23] = hr[3:8]; extra[24] = hr[8:16]; extra[25] = hr[16:24]; extra[26] = hr[24:28]
    kr0 = [(item('kr', (kb, st_), 0), gB2 + 1) for kb in range(4) for st_ in range(4)]
    extra[30] = kr0[:6]; extra[31] = kr0[6:12]
    kvx = {(22, 1): [('K', 0, gBq + 1)], (29, 1): [('K', 1, gB2 + 1), ('V', 0, gB2 + 1)]}
    place_ring(tl, z, stages, starts, blk_end, extra, kvx)
    for ins, lo in kr0[12:]: z.D(gX, ins, gX + 20)
    tmps = [v(249 + k) for k in range(7)]
    tfree = [0] * 7; n_el = 0
    g_lo = starts[8]; g_hi = gBq - 8
    els = [(b, qb) for b in range(4) for qb in range(4) if not (b == 3 and qb >= 2)]
    tot = len(els) * 4
    lastw = gBm
    for (b, qb) in els:
        h = Hacc(b, qb); fin = []
        for r in range(4):
            k = n_el % 7; t = tmps[k]
            g = max(g_lo - 12 + ((g_hi - 30 - g_lo) * n_el) // tot, done[('w1', 0, b, qb)] + 4, tfree[k]); n_el += 1
            chain = [valu('v_mul_f32', t, h[r], h[r]), valu('v_fma_f32', t, t, sBETA, vALPHA), valu('v_mul_f32', t, t, h[r]),
                     valu('v_exp_f32', t, t), valu('v_fma_f32', t, t, sCQ, sCQ), valu('v_rcp_f32', t, t), valu('v_mul_f32', h[r], h[r], t)]
            for ins in chain: g = tl.place(g, ins, g + 5) + 1
            tfree[k] = g; fin.append(g)
        g = tl.place(max(fin[0], fin[1]), valu('v_cvt_pk_bf16_f32', h[0], h[0], h[1]), max(fin[0], fin[1]) + 4)
        g = tl.place(max(fin[2], fin[3], g + 1), valu('v_cvt_pk_bf16_f32', h[1], h[2], h[3]), max(fin[2], fin[3], g + 1) + 4)
        done[('gelu', b, qb)] = g
    for (b, qb) in els:
        h = Hacc(b, qb)
        g = max(done[('gelu', b, qb)] + 1, lastw + 1)
        if qb % 2 == 0: g = tl.place(g, valu('v_add_u32', vHW, sHS[b], vBF[qb // 2]), g + 3) + 1
        lastw = tl.place(g, ds_write('ds_write_b64', vHW, h[0:2], (qb % 2) * 1024, tok=[('H',)]), g + 6)
        assert lastw < gBq, (lastw, gBq)
    zc1 = starts[28]
    lastc = 0; sw = []
    for st_ in range(4):
        for qb in range(4):
            e, o_ = Qacc(2 * st_, qb), Qacc(2 * st_ + 1, qb)
            ch, b = st_ // 2, (2 * st_) % 4
            g = max(done[('wq', ch, b + 1, qb)] + 4, lastc)
            for d_, src, k in ((e[0], e, 0), (e[1], e, 2), (e[2], o_, 0), (e[3], o_, 2)):
                g = tl.place(g, tagr(valu('v_cvt_pk_bf16_f32', d_, src[k], src[k + 1]), src[k:k + 2], ('acc', 'wq')), zc1 - 4)
            lastc = g; sw.append((g + 1, e))
    g = 0
    for k, (lo, e) in enumerate(sw):
        dl = gX - 40 + 2 * k
        g = tl.place(max(lo, g), tagw(swap16(e[0], e[2]), 'Q'), max(dl, lo)); g = tl.place(g + 1, tagw(swap16(e[1], e[3]), 'Q'), max(dl + 1, g + 1))
    pack_store(tl, z, Zacc, 0, lambda b, qb: done[('w2', 0, b, qb)] + 4, 1, gX - 12)
    g = gBq + 2
    for ins in [valu('v_mov_b32', v(NEGM + k), 0) for k in range(16)] + attn_init():
        g = tl.place(g, ins, gX - 4)
    for ins in ones_init(): g = tl.place(g + 1, ins, gX - 2)
    zl = pack_store(tl, z, Zacc, 1, lambda b, qb: done[('w2', 1, b, qb)] + 4, 1, gX + 40)
    fill_xm1(tl, z, gX, N, items, zl + 1)
    tl1, z1 = tl, z

    it0 = Timeline(); add_iter(it0, N, items, 0, first=True)
    lp = Timeline(); add_iter(lp, N, items, 1); add_iter(lp, N, items, 0)
    lp.busy_sh = set(); it0.busy_sh = set()
    te = Timeline(); ze = Sched(te)
    g29 = add_iter(te, N, items, 1, skip_own=('kd', 'ks'))
    g30 = add_iter(te, N, items, 0, skip_own=('kd', 'ks', 'vd', 'vs', 'kr'), skip_late=('kd', 'ks'))
    ostages = {}
    for k in range(16): ostages[k] = Stage('wo', k % 8, k // 8)
    lastv = max(g for g, kind, idx in items if kind == 'vd')
    ze.lastG = g29 + lastv + 1
    for j in range(3):
        for kk in range(2):
            sc, dd = stage_group(j, ostages[j], kk); ze.group(sc, dd, 0, step=3)
    assert ze.lastG < te.n() - 1, (ze.lastG, te.n())
    late = [item(kind, idx, 0) for g, kind, idx in sorted(items, key=lambda t: t[0]) if g >= N and kind in ('exp', 'add', 'cvt')]
    vr = [item('vr', (i, kh, e), 0) for i in range(8) for kh in range(2) for e in range(2)]
    mid = []
    for k, ins in enumerate(late):
        mid.append(ins)
        if k % 3 == 2 and len(vr) > 16: mid.append(vr.pop(0))
    ty = Timeline(); zy = Sched(ty)
    for y in y_order(): ty.add(y_mfma(y, 1, False))
    for ins in vr: zy.D(0, ins)
    ty.put(zy.lastD + 6, barrier(free=[('V', 1), ('V', 0), ('K', 0), ('K', 1)]))

    nz = []; A = nz.append; E = nz.extend
    E(stamp('attn_end'))
    rl = [v(NEGM + k) for k in range(4)]; tt = v(NEGM + 4)
    for qb in range(4):
        if qb in cfg.msum_qb: A(valu('v_mov_b32', rl[qb], v(LSUM + 4 * cfg.msum_qb.index(qb))))
        else:
            k = ADDQ.index(qb)
            A(valu('v_add_f32', rl[qb], v(LADD + 2 * k), v(LADD + 2 * k + 1)))
            A(valu('v_mov_b32', tt, rl[qb])); A(swap32(rl[qb], tt)); A(valu('v_add_f32', rl[qb], rl[qb], tt))
            A(valu('v_mov_b32', tt, rl[qb])); A(swap16(rl[qb], tt)); A(valu('v_add_f32', rl[qb], rl[qb], tt))
    A(salu('s_mov_b32', sT0, 2.0 ** -40)); A(salu('s_mov_b32', sT1, 2.0 ** 40)); A(salu('s_mov_b32', sT2, 1 if cfg.force_slow else 0))
    for qb in range(4):
        A(raw(f"v_cmp_nle_f32 vcc, {sT0}, {rl[qb]}", 'V', [sT0, rl[qb]], [VCC]))
        A(raw(f"s_or_b32 {sT2}, {sT2}, vcc_lo", 'S', [sT2, VCC], [sT2])); A(raw(f"s_or_b32 {sT2}, {sT2}, vcc_hi", 'S', [sT2, VCC], [sT2]))
        A(raw(f"v_cmp_nge_f32 vcc, {sT1}, {rl[qb]}", 'V', [sT1, rl[qb]], [VCC]))
        A(raw(f"s_or_b32 {sT2}, {sT2}, vcc_lo", 'S', [sT2, VCC], [sT2])); A(raw(f"s_or_b32 {sT2}, {sT2}, vcc_hi", 'S', [sT2, VCC], [sT2]))
    A(valu('v_mov_b32', tt, sT2)); A(salu('s_lshl_b32', sT0, sW, 2)); A(valu('v_mov_b32', v(NEGM + 5), sT0))
    A(ds_write('ds_write_b32', v(NEGM + 5), tt, 0, tok=[('flag',)]))
    A(barrier(need=[('flag',)]))
    A(valu('v_mov_b32', v(NEGM + 5), 0))
    A(ds_read('ds_read_b128', v(NEGM + 8, 4), v(NEGM + 5), 0, tok=[('flag',)]))
    for qb in range(4): A(valu('v_rcp_f32', rl[qb], rl[qb]))
    A(valu('v_or_b32', tt, v(NEGM + 8), v(NEGM + 9))); A(valu('v_or3_b32', tt, tt, v(NEGM + 10), v(NEGM + 11)))
    A(valu('v_readfirstlane_b32', sT2, tt))
    A(barrier(free=[('flag',)]))
    A(salu('s_andn2_b32', sT2, sT2, sSLOW))
    A(branch('s_cbranch_scc1', 'L_slow'))
    nz2 = []; A = nz2.append; E = nz2.extend
    A(salu('s_lshl_b32', sT0, sW, 14)); A(valu('v_add_u32', vHW, sT0, vL16))
    for g_ in range(4): E(stage_reads(0, ostages[0], g_))
    for sp in range(4):
        for qb in range(4):
            t8 = v(SB + 8 * ((4 * sp + qb) % 8), 8)
            for k in range(8): A(valu('v_accvgpr_read_b32', t8[k], O(2 * sp + k // 4, qb)[k % 4]))
            for k in range(8): A(valu('v_mul_f32', t8[k], t8[k], rl[qb]))
            for k in range(4): A(valu('v_cvt_pk_bf16_f32', t8[k], t8[2 * k], t8[2 * k + 1]))
            A(ds_write('ds_write_b128', vHW, t8[0:4], sp * 4096 + qb * 1024, tok=[('O',)]))
    for kk in range(2):
        sc, dd = stage_group(3, ostages[3], kk); E(sc); E(dd)
    A(barrier(need=[('O',)]))
    E(stamp('o_xchg'))
    def Bo(j, kk, qb): return a(128 + 32 * (j % 2) + 16 * kk + 4 * qb, 4)
    def oread(j, kk, qb): return tagw(ds_read('ds_read_b128', Bo(j, kk, qb), vL16, (2 * ostages[j].kp + kk) * 4096 + qb * 1024, tok=[('O',)]), ('B', j))
    for qb in range(4):
        for kk in range(2): A(oread(0, kk, qb))
    to = Timeline(); zo = Sched(to)
    starts = {}; blk_end = {}; done = {}
    for j in range(16):
        st = ostages[j]; starts[j] = to.n()
        for b in range(4):
            for qb in range(4):
                for kk in range(2):
                    d = Zacc(st.ch, b, qb)
                    m_ = mfma(d, Af(j % 2, b, kk), Bo(j, kk, qb), 0 if st.kp == 0 and kk == 0 else d)
                    tagr(m_, Af(j % 2, b, kk), ('A', st.kind, j)); tagr(m_, Bo(j, kk, qb), ('B', j)); tagw(m_, ('acc', 'wo'))
                    g = to.add(m_)
                done[(st.ch, b, qb)] = g
            blk_end[(j, b)] = to.n() - 1
    starts[16] = to.n()
    place_ring(to, zo, ostages, starts, blk_end, {j: [(oread(j + 1, kk, qb), 0) for qb in range(4) for kk in range(2)] for j in range(15)})
    pack_store(to, zo, Zacc, 0, lambda b, qb: done[(0, b, qb)] + 4, 0)
    fin = []; A = fin.append
    for bp in range(2):
        A(salu('s_add_u32', sST[bp], sPB, (8 + bp * 4) * 1024))
        for qb in range(4):
            e, o_ = Zacc(1, 2 * bp, qb), Zacc(1, 2 * bp + 1, qb)
            A(valu('v_cvt_pk_bf16_f32', e[0], e[0], e[1])); A(valu('v_cvt_pk_bf16_f32', e[1], e[2], e[3]))
            A(valu('v_cvt_pk_bf16_f32', e[2], o_[0], o_[1])); A(valu('v_cvt_pk_bf16_f32', e[3], o_[2], o_[3]))
            A(bstore('buffer_store_dwordx4', e, vL16, SRD_WS, sST[bp], qb * 1024))
    if cfg.stamps:
        fin += stamp('end')
        A(salu('s_lshl_b32', sT0, s(2), 10)); A(salu('s_lshl_b32', sT1, sW, 8)); A(salu('s_add_u32', sT0, sT0, sT1))
        A(salu('s_add_u32', sT0, sT0, 1 << 26)); A(valu('v_lshrrev_b32', vHW, 2, vL16))
        A(bstore('buffer_store_dword', v(0), vHW, SRD_WS, sT0))
    A(label('L_end')); A(raw('s_endpgm', 'J'))

    sl = []; A = sl.append; E = sl.extend
    A(label('L_slow'))
    A(waitall())
    A(salu('s_mov_b32', sSLOW, -1)); A(salu('s_mov_b32', sIT, 0)); A(salu('s_mov_b32', sKO, sKV0))
    mx = [v(PB + k) for k in range(4)]
    for qb in range(4): A(valu('v_mov_b32', mx[qb], 0xff800000))
    for k in range(16): A(valu('v_mov_b32', v(NEGM + k), 0))
    sl_loop = []; A = sl_loop.append; E = sl_loop.extend
    A(label('L_max'))
    A(barrier(free=[('K', 0)]))
    sc, dd = kv_group('K', 0); E(sc); E(dd)
    A(barrier(need=[('K', 0)]))
    for kb in range(4):
        for st_ in range(4): A(item('kr', (kb, st_), 0))
    E(x_mfmas())
    for kb in range(4):
        for qb in range(4):
            A(valu('v_max3_f32', mx[qb], S(kb, qb)[0], S(kb, qb)[1], mx[qb])); A(valu('v_max3_f32', mx[qb], S(kb, qb)[2], S(kb, qb)[3], mx[qb]))
    A(salu('s_add_u32', sIT, sIT, 1)); A(scmp('s_cmp_lt_u32', sIT, 32)); A(branch('s_cbranch_scc1', 'L_max'))
    sl2 = []; A = sl2.append; E = sl2.extend
    tt = v(PB + 4)
    for qb in range(4):
        A(valu('v_mov_b32', tt, mx[qb])); A(swap32(mx[qb], tt)); A(valu('v_max_f32', mx[qb], mx[qb], tt))
        A(valu('v_mov_b32', tt, mx[qb])); A(swap16(mx[qb], tt)); A(valu('v_max_f32', mx[qb], mx[qb], tt))
        for r in range(4): A(valu('v_sub_f32', NM(qb)[r], 0, mx[qb]))
    E(attn_init())
    A(salu('s_mov_b32', sKO, sKV0)); A(salu('s_mov_b32', sVO, sKV0))
    A(barrier(free=[('K', 0)]))
    for which, slot in (('K', 0), ('K', 1), ('V', 0)):
        sc, dd = kv_group(which, slot); E(sc); E(dd)
    A(barrier(need=[('K', 0)]))
    for kb in range(4):
        for st_ in range(4): A(item('kr', (kb, st_), 0))
    ts = Timeline(); zs = Sched(ts)
    gs = add_xm1(ts, zs, N, items); fill_xm1(ts, zs, gs, N, items, 0)
    sl3 = [branch('s_branch', 'L_it0')]

    l_it0 = [label('L_it0')]
    pre_loop = [salu('s_mov_b32', sIT, 0)]
    l_loop = [label('L_loop')]
    cnt = [salu('s_add_u32', sIT, sIT, 1), scmp('s_cmp_lt_u32', sIT, 14)]
    back = [branch('s_cbranch_scc1', 'L_loop')]
    st_a = stamp('xm1_end'); st_b = stamp('loop_end')
    def paths():
        head = pro1 + pro2 + pre + tl1.emit() + st_a
        body = l_loop + lp.emit() + back
        att = l_it0 + it0.emit() + body + body + body + st_b + te.emit() + mid + ty.emit() + nz
        main = head + att + nz2 + to.emit() + fin
        slow = att[-400:] + sl + sl_loop + sl_loop + sl2 + ts.emit() + sl3 + att
        return [main, slow]
    for p in paths(): pass
    for _ in range(10):
        if not any([insert_waits(p) for p in paths()]): break
    for t_, z_ in ((tl1, z1), (te, ze), (to, zo), (ts, zs)):
        mark_busy(t_); place_flex(t_, z_.flex)
    mark_busy(it0); mark_busy(lp)
    place_flex(it0, [(pre_loop, 0, 60)])
    lastsc = max(g for g in range(lp.n()) if lp.sh[g])
    place_flex(lp, [(cnt, lastsc + 1, lp.n() - 1)])
    finalize(paths())
    check_tags(paths()[0])
    seq = pro1 + pro2 + pre + tl1.emit() + st_a + l_it0 + it0.emit() + l_loop + lp.emit() + back + st_b + te.emit() + mid + ty.emit() + nz + nz2 + to.emit() + fin \
        + sl + sl_loop + sl2 + ts.emit() + sl3
    info = dict(N=N, steady_ovf=ovf, tl1=(tl1.n(), tl1.overflow()), te=(te.n(), te.overflow()), to=(to.n(), to.overflow()),
                nops=sum(i.pre_nop for i in lp.emit()), waits=sum(bool(i.pre_wait) for i in lp.emit()),
                nops1=sum(i.pre_nop for i in tl1.emit()), nopso=sum(i.pre_nop for i in to.emit()))
    return seq, info

def build_k2():
    o = []; A = o.append; E = o.extend
    A(scmp('s_cmp_ge_u32', s(2), 512)); A(branch('s_cbranch_scc1', 'L2_end'))
    A(sload('s_load_dwordx2', s(4, 2), s(0, 2), 0)); A(sload('s_load_dwordx4', s(8, 4), s(0, 2), 72)); A(sload('s_load_dwordx2', s(6, 2), s(0, 2), 96))
    SX, SO_, SW_, SB_ = s(12, 4), s(16, 4), s(20, 4), s(24, 4)
    vu, vc, vt, vx, vb = v(1), v(2), v(3), v(4), v(5)
    A(valu('v_lshlrev_b32', vu, 4, v(0))); A(salu('s_lshl_b32', s(28), s(2), 12))
    A(valu('v_and_b32', vc, 15, v(0))); A(valu('v_bfe_u32', vt, v(0), 4, 2)); A(valu('v_lshrrev_b32', vx, 6, v(0)))
    A(valu('v_lshl_add_u32', vx, vx, 4, vc)); A(valu('v_lshlrev_b32', vx, 10, vx))
    A(valu('v_lshlrev_b32', vb, 3, vt)); A(valu('v_add_u32', vx, vx, vb))
    A(salu('s_lshr_b32', s(29), s(2), 4)); A(salu('s_lshl_b32', s(29), s(29), 16))
    A(salu('s_and_b32', s(30), s(2), 15)); A(salu('s_lshl_b32', s(30), s(30), 6)); A(salu('s_add_u32', s(29), s(29), s(30)))
    E(srd(SW_, s(6, 2), 1 << 28))
    for kind in (1, 0):
        for g in range(8):
            A(salu('s_add_u32', s(31 + (g % 2)), s(28), kind * (1 << 24) + g * (1 << 21)))
            A(bload('buffer_load_dwordx4', v(16 + 32 * kind + 4 * g, 4), vu, SW_, s(31 + (g % 2))))
        if kind == 1:
            E(srd(SB_, s(8, 2), 1024)); E(srd(SX, s(4, 2), 2048 * 512 * 2))
            A(bload('buffer_load_dwordx2', v(8, 2), vb, SB_, s(30))); A(bload('buffer_load_dwordx2', v(10, 2), vb, SB_, s(30), 32))
    A(bload('buffer_load_dwordx2', v(12, 2), vx, SX, s(29))); A(bload('buffer_load_dwordx2', v(14, 2), vx, SX, s(29), 32))
    E(srd(SO_, s(10, 2), 2048 * 512 * 2))
    A(salu('s_mov_b32', s(33), 0x00003f80)); A(salu('s_mov_b32', s(34), 0x3f800000)); A(salu('s_mov_b32', s(35), -math.log2(math.e)))
    zz = [v(80 + k) for k in range(8)]; yy = [v(88 + k) for k in range(8)]; xx = [v(96 + k) for k in range(8)]
    def unpack(dst, src):
        for k in range(4):
            A(valu('v_lshlrev_b32', dst[2 * k], 16, src[k])); A(valu('v_and_b32', dst[2 * k + 1], 0xffff0000, src[k]))
    def accum(dst, src):
        for k in range(4):
            A(valu('v_dot2_f32_bf16', dst[2 * k], src[k], s(33), dst[2 * k])); A(valu('v_dot2_f32_bf16', dst[2 * k + 1], src[k], s(34), dst[2 * k + 1]))
    unpack(zz, v(48, 4))
    for g in range(1, 8): accum(zz, v(48 + 4 * g, 4))
    accum(zz, v(8, 4))
    for k in range(8): A(valu('v_mul_f32', xx[k], s(35), zz[k]))
    for k in range(8): A(valu('v_exp_f32', xx[k], xx[k]))
    for k in range(8): A(valu('v_add_f32', xx[k], 1.0, xx[k]))
    for k in range(8): A(valu('v_rcp_f32', xx[k], xx[k]))
    for k in range(8): A(valu('v_mul_f32', zz[k], zz[k], xx[k]))
    unpack(yy, v(16, 4))
    for g in range(1, 8): accum(yy, v(16 + 4 * g, 4))
    unpack(xx, v(12, 4))
    for k in range(8): A(valu('v_fma_f32', xx[k], yy[k], zz[k], xx[k]))
    for k in range(4): A(valu('v_cvt_pk_bf16_f32', v(8 + k), xx[2 * k], xx[2 * k + 1]))
    A(bstore('buffer_store_dwordx2', v(8, 2), vx, SO_, s(29))); A(bstore('buffer_store_dwordx2', v(10, 2), vx, SO_, s(29), 32))
    A(label('L2_end')); A(raw('s_endpgm', 'J'))
    finalize([o])
    return o

def kd(name, nv, acc, ns=102):
    return [".p2align 6", f".amdhsa_kernel {name}", f"  .amdhsa_next_free_vgpr {nv}", f"  .amdhsa_next_free_sgpr {ns}",
            f"  .amdhsa_accum_offset {acc}", "  .amdhsa_group_segment_fixed_size 0", "  .amdhsa_kernarg_size 104",
            "  .amdhsa_user_sgpr_count 2", "  .amdhsa_user_sgpr_kernarg_segment_ptr 1", "  .amdhsa_system_sgpr_workgroup_id_x 1",
            ".end_amdhsa_kernel"]

def generate():
    k1, info = build_k1(); k2 = build_k2()
    K1 = NAME + "_kernel"; K2 = "final_kernel"
    L = [f"; @launch kernel={K1} grid=(256,1,1) block=(256,1,1) lds=163840",
         f"; @launch kernel={K2} grid=(512,1,1) block=(256,1,1) lds=0",
         '.amdgcn_target "amdgcn-amd-amdhsa--gfx950"', ".text"]
    for nm, body in ((K1, k1), (K2, k2)):
        L += [f".globl {nm}", ".p2align 8", f".type {nm},@function", f"{nm}:"] + render(body)
    L += ['.section .rodata,"a"'] + kd(K1, 512, 256) + kd(K2, 104, 104, 40)
    return "\n".join(L) + "\n", info

if __name__ == "__main__":
    out = sys.argv[1] if len(sys.argv) > 1 else "k.s"
    for kv in sys.argv[2:]:
        k, val = kv.split("="); setattr(cfg, k, eval(val))
    t, info = generate()
    open(out, "w").write(t)
    open(out + ".stamps", "w").write(" ".join(STAMPS))
    print(info, "lines", t.count("\n"), "stamps", STAMPS)
```

```python
import re

def R(kind, n, cnt=1):
    if cnt == 1:
        return Reg(f"{kind}{n}", [(kind, n)])
    return Reg(f"{kind}[{n}:{n+cnt-1}]", [(kind, n + i) for i in range(cnt)])

class Reg:
    def __init__(s, text, regs): s.text = text; s.regs = regs
    def __str__(s): return s.text
    def __getitem__(s, i):
        k, n = s.regs[0]
        if isinstance(i, slice):
            st = i.start or 0
            return R(k, n + st, i.stop - st)
        return R(k, n + i)
def v(n, c=1): return R('v', n, c)
def a(n, c=1): return R('a', n, c)
def s(n, c=1): return R('s', n, c)
VCC = Reg("vcc", [('s', 'vcc')]); M0 = Reg("m0", [('s', 'm0')]); EXEC = Reg("exec", [('s', 'exec')])
SCC = ('s', 'scc')

def regs_of(x):
    return x.regs if isinstance(x, Reg) else []
def txt(x):
    if isinstance(x, Reg): return x.text
    if isinstance(x, float):
        import struct
        return hex(struct.unpack('<I', struct.pack('<f', x))[0])
    if isinstance(x, int):
        return str(x) if -16 <= x <= 64 else hex(x & 0xffffffff)
    return str(x)

class I:
    def __init__(s, text, cls, rd=(), wr=(), **kw):
        s.text = text; s.cls = cls; s.rd = list(rd); s.wr = list(wr)
        s.lrd = kw.get('lrd', [])
        s.lwr = kw.get('lwr', [])
        s.sub = kw.get('sub')
        s.srcc = kw.get('srcc', [])
        s.data = kw.get('data', [])
        s.pre_wait = {}
        s.pre_nop = 0
        s.comment = kw.get('comment')
    def __repr__(s): return s.text

def flat(*xs):
    o = []
    for x in xs: o += regs_of(x)
    return o

def mfma(d, A, B, C):
    return I(f"v_mfma_f32_16x16x32_bf16 {d}, {A}, {B}, {txt(C)}", 'M', flat(A, B, C), flat(d), srcc=flat(C))
TRANS = ('v_exp_f32', 'v_rcp_f32', 'v_rsq_f32', 'v_sqrt_f32', 'v_log_f32')
def valu(op, d, *src, mods=""):
    cls = 'T' if op in TRANS else 'V'
    rd = flat(*src); wr = flat(d)
    sub = None
    if op.startswith('v_dot2'): sub = 'dot'
    if op in ('v_fmac_f32',): rd += flat(d)
    if op in ('v_readfirstlane_b32', 'v_readlane_b32'): sub = 'readlane'
    if op == 'v_writelane_b32': rd += flat(d)
    if op.startswith('v_cndmask') and len(src) == 2:
        rd += VCC.regs
        return I(f"{op} {d}, " + ", ".join(txt(x) for x in src) + ", vcc", cls, rd, wr)
    return I(f"{op} {d}, " + ", ".join(txt(x) for x in src) + (" " + mods if mods else ""), cls, rd, wr, sub=sub)
def dpp(op, d, x, y, perm):
    ops = f"{d}, {x}" + (f", {y}" if y is not None else "")
    i = I(f"{op}_dpp {ops} quad_perm:[{','.join(map(str, perm))}] row_mask:0xf bank_mask:0xf", 'V', flat(x, y), flat(d), sub='dpp')
    return i
def swap16(x, y): return I(f"v_permlane16_swap_b32 {x}, {y}", 'P', flat(x, y), flat(x, y))
def swap32(x, y): return I(f"v_permlane32_swap_b32 {x}, {y}", 'P', flat(x, y), flat(x, y))
def salu(op, d, *src):
    wr = flat(d); rd = flat(*src)
    if op not in ('s_mov_b32', 's_mov_b64', 's_movk_i32', 's_mul_i32', 's_mul_hi_u32', 's_cselect_b32', 's_getpc_b64'): wr = wr + [SCC]
    if op in ('s_cselect_b32', 's_addc_u32'): rd = rd + [SCC]
    return I(f"{op} {d}" + "".join(", " + txt(x) for x in src), 'S', rd, wr)
def scmp(op, x, y): return I(f"{op} {txt(x)}, {txt(y)}", 'S', flat(x, y), [SCC])
def ds_read(op, d, addr, off=0, tok=()):
    assert 0 <= off < 65536, off
    return I(f"{op} {d}, {addr}" + (f" offset:{off}" if off else ""), 'D', flat(addr), flat(d), lrd=list(tok))
def ds_write(op, addr, data, off=0, tok=()):
    assert 0 <= off < 65536, off
    return I(f"{op} {addr}, {data}" + (f" offset:{off}" if off else ""), 'W', flat(addr, data), [], lwr=list(tok))
def dma(voff, srd, soff, off=0, tok=(), mods=""):
    assert 0 <= off < 4096
    return I(f"buffer_load_dwordx4 {voff}, {srd}, {txt(soff)} offen" + (f" offset:{off}" if off else "") + (" " + mods if mods else "") + " lds", 'G',
             flat(voff, srd, soff, M0), [], lwr=list(tok), sub='dma')
def bload(op, d, voff, srd, soff, off=0, mods=""):
    assert 0 <= off < 4096
    return I(f"{op} {d}, {voff}, {srd}, {txt(soff)} offen" + (f" offset:{off}" if off else "") + (" " + mods if mods else ""), 'G',
             flat(voff, srd, soff), flat(d), sub='load')
def bstore(op, data, voff, srd, soff, off=0, mods="", tok=()):
    assert 0 <= off < 4096
    return I(f"{op} {data}, {voff}, {srd}, {txt(soff)} offen" + (f" offset:{off}" if off else "") + (" " + mods if mods else ""), 'G',
             flat(data, voff, srd, soff), [], sub='store', data=flat(data), lwr=list(tok))
def barrier(need=(), free=()):
    i = I("s_barrier", 'B'); i.need = list(need); i.free = list(free); return i
def sload(op, d, base, off): return I(f"{op} {d}, {base}, {hex(off)}", 'X', flat(base), flat(d))
def label(n): return I(f"{n}:", 'L')
def branch(op, n):
    rd = [SCC] if 'scc' in op else (VCC.regs if 'vcc' in op else [])
    return I(f"{op} {n}", 'J', rd, [])
def raw(text, cls='S', rd=(), wr=()): return I(text, cls, flat(*rd), flat(*wr))
def waitall():
    i = I("s_waitcnt vmcnt(0) lgkmcnt(0)", 'S'); i.sub = 'waitall'; return i
def waitvm(n):
    i = I(f"s_waitcnt vmcnt({n})", 'S'); i.sub = 'waitvm'; i.n = n; return i

class Timeline:
    def __init__(s, cyclic=False):
        s.m = []; s.gap = []; s.sh = []; s.cyclic = cyclic; s.flex = []
    def add(s, m):
        s.m.append(m); s.gap.append([]); s.sh.append([]); return len(s.m) - 1
    def n(s): return len(s.m)
    COST = {'V': 1, 'T': 2, 'P': 2, 'D': 1, 'G': 2, 'W': 2, 'B': 2, 'X': 0}
    def used(s, g): return sum(s.COST[i.cls] for i in s.gap[g])
    def fits(s, g, cls):
        if s.used(g) + s.COST[cls] > 2: return False
        if cls == 'D' and any(i.cls == 'D' for i in s.gap[g]): return False
        return True
    def put(s, g, ins):
        gg = g % s.n() if s.cyclic else g
        if ins.cls == 'S': s.sh[gg].append(ins)
        elif ins.cls in 'DGWB' and not any(i.cls in 'DGWB' for i in s.gap[gg]) and not getattr(ins, 'keep_order', False):
            s.gap[gg].insert(0, ins)
        else: s.gap[gg].append(ins)
        ins.at = g
        return g
    def place(s, g0, ins, deadline=None, step=1):
        lim = deadline if deadline is not None else (g0 + s.n() - 1 if s.cyclic else s.n() - 1)
        g = g0
        while g <= lim:
            gg = g % s.n() if s.cyclic else g
            if ins.cls == 'S':
                if not s.sh[gg] and not any(i.cls == 'G' for i in s.gap[gg]): return s.put(g, ins)
            elif s.fits(gg, ins.cls): return s.put(g, ins)
            g += step
        best = min(range(g0, max(lim, g0) + 1), key=lambda x: (s.used(x % s.n() if s.cyclic else x) + 3*len(s.sh[x % s.n() if s.cyclic else x]) * (ins.cls == 'S'), x))
        return s.put(best, ins)
    def emit(s, g0=0, g1=None):
        out = []
        for g in range(g0, s.n() if g1 is None else g1):
            out.append(s.m[g]); out += s.sh[g]; out += s.gap[g]
        return out
    def overflow(s):
        return sum(max(0, s.used(g) - 2) for g in range(s.n()))

def insert_waits(path, hoist=True):
    changed = False
    vm = []; lg = []
    smem = []
    last_m = None
    nvm = 0; nlg = 0
    shadows = []
    for idx, ins in enumerate(path):
        if idx > 0 and path[idx - 1].cls == 'M':
            shadows.append((ins, nvm, nlg, idx)); del shadows[:-3]
        if ins.cls in 'LJB' and not (ins.cls == 'B'): shadows.clear()
        def apply(w):
            if 'vm' in w:
                while len(vm) > w['vm']: vm.pop(0)
            if 'lgkm' in w:
                if w['lgkm'] == 0: smem.clear()
                while len(lg) > w['lgkm']: lg.pop(0)
        apply(ins.pre_wait)
        rd = set(ins.rd); wr = set(ins.wr)
        lrd = set(ins.lrd) | set(getattr(ins, 'need', [])); lwr = set(ins.lwr) | set(getattr(ins, 'free', []))
        def conflict(p, q):
            if set(p.wr) & (rd | wr): return True
            if q == 'lg' and ins.cls in 'DW': return False
            if set(p.lwr) & (lrd | (lwr if ins.cls != 'B' and ins.sub != 'dma' else set())): return True
            if set(p.lrd) & lwr: return True
            return False
        for name, q, mx in (('vm', vm, 62), ('lgkm', lg, 14)):
            k = -1
            for j, (p, seq) in enumerate(q):
                if conflict(p, 'lg' if name == 'lgkm' else 'vm'): k = j
            if k >= 0:
                seq = q[k][1]
                tgt = ins; cnt = nvm if name == 'vm' else nlg
                if hoist:
                    for sh in reversed(shadows):
                        if idx - sh[3] > 8: break
                        if sh[0].cls == 'G': continue
                        c2 = sh[1] if name == 'vm' else sh[2]
                        if seq < c2: tgt = sh[0]; cnt = c2
                        break
                n = min(cnt - seq - 1, mx)
                if name == 'lgkm' and smem: n = 0
                if tgt.pre_wait.get(name, 99) > n:
                    tgt.pre_wait[name] = n; changed = True
                del q[:k + 1]
        if any(set(p.wr) & (rd | wr) for p in smem):
            if ins.pre_wait.get('lgkm', 99) > 0:
                ins.pre_wait['lgkm'] = 0; changed = True
            smem.clear(); lg.clear()
        if ins.sub == 'waitall': vm.clear(); lg.clear(); smem.clear()
        if ins.sub == 'waitvm':
            while len(vm) > ins.n: vm.pop(0)
        if ins.cls == 'G': vm.append((ins, nvm)); nvm += 1
        if ins.cls in 'DW': lg.append((ins, nlg)); nlg += 1
        if ins.cls == 'X': smem.append(ins)
    return changed

def hazard_need(p, c):
    pw = set(p.wr); need = 0
    VALU = 'VTP'
    crd = set(c.rd); cwr = set(c.wr)
    if p.cls in VALU:
        vw = {r for r in pw if r[0] in 'va'}; sw = {r for r in pw if r[0] == 's'}
        if c.cls == 'M' and vw & crd: need = max(need, 2)
        if (c.cls == 'P' or c.sub == 'dpp') and vw & crd: need = max(need, 2)
        if c.sub == 'readlane' and vw & crd: need = max(need, 1)
        if p.cls == 'T' and c.cls in VALU + 'GDW' and vw & crd: need = max(need, 1)
        if p.sub == 'dot' and vw & (crd | cwr): need = max(need, 3)
        if sw & crd:
            if c.cls in VALU: need = max(need, 4)
            elif c.cls == 'G': need = max(need, 5)
            else: need = max(need, 2)
    if p.cls == 'M':
        if c.cls == 'M':
            ab = crd - set(c.srcc)
            if pw & ab: need = max(need, 8)
            if pw & set(c.srcc) and p.wr != c.srcc: need = max(need, 6)
            if pw & cwr and not (pw & set(c.srcc)): need = max(need, 6)
        elif pw & (crd | cwr): need = max(need, 8)
        if c.cls in VALU and set(p.srcc) & cwr: need = max(need, 3)
    if p.cls == 'S' and ('s', 'm0') in pw and (c.sub == 'dma' or ('s', 'm0') in crd and c.cls != 'S'): need = max(need, 1)
    if p.sub == 'store' and len(p.data) >= 3 and set(p.data) & cwr: need = max(need, 2)
    return need

def insert_nops(path):
    changed = False
    W = 10
    hist = []
    pos = 0
    for ins in path:
        if ins.cls == 'L': continue
        pos += (1 if ins.pre_wait else 0)
        base = pos
        need_pos = base + ins.pre_nop
        for p, pp in hist[-W:]:
            h = hazard_need(p, ins)
            if h and pp + 1 + h > need_pos: need_pos = pp + 1 + h
        if need_pos - base > ins.pre_nop:
            ins.pre_nop = need_pos - base; changed = True
        pos = base + ins.pre_nop
        hist.append((ins, pos))
        m = re.match(r"s_nop (\d+)", ins.text)
        pos += 1 + (int(m.group(1)) if m else 0)
    return changed

def finalize(paths):
    for _ in range(20):
        ch = False
        for p in paths: ch |= insert_waits(p)
        if not ch: break
    else: raise RuntimeError("waits do not converge")
    for _ in range(20):
        ch = False
        for p in paths: ch |= insert_nops(p)
        if not ch: break

def render(seq):
    out = []
    for i in seq:
        if i.pre_wait:
            w = " ".join(f"{'vmcnt' if k == 'vm' else 'lgkmcnt'}({n})" for k, n in sorted(i.pre_wait.items(), reverse=True))
            out.append(f"  s_waitcnt {w}")
        n = i.pre_nop
        while n > 0:
            k = min(n, 16); out.append(f"  s_nop {k-1}"); n -= k
        out.append(i.text if i.cls == 'L' else "  " + i.text + (f"  ; {i.comment}" if i.comment else ""))
    return out

def tagw(ins, tag):
    ins.wtag = tag; return ins
def tagr(ins, regs, tag):
    if not hasattr(ins, 'rtag'): ins.rtag = []
    ins.rtag.append((regs.regs, tag)); return ins
def check_tags(path):
    cur = {}; bad = 0
    for k, ins in enumerate(path):
        for regs, tag in getattr(ins, 'rtag', []):
            for r in regs:
                if cur.get(r) != tag:
                    bad += 1
                    if bad < 10: print("TAG MISMATCH at", k, ins.text, r, "has", cur.get(r), "wants", tag)
                    break
        t = getattr(ins, 'wtag', None)
        for r in ins.wr: cur[r] = t
        for tok in ins.lwr: cur[tok] = t
        for tok in ins.lrd:
            w = getattr(ins, 'ltag', None)
            if w is not None and cur.get(tok) != w:
                bad += 1
                if bad < 10: print("LDS TAG MISMATCH at", k, ins.text, tok, "has", cur.get(tok), "wants", w)
    assert not bad, bad

def gap_cost(seq):
    t = 8; prev = 'M'; first = True
    for c in seq:
        if c in 'SX':
            if not first: t += 4
        elif c == 'V': t += 4
        elif c in 'TP': t += 8
        elif c == 'D': t += 12 if prev in 'VTP' else (8 if prev in 'DWG' else 4)
        elif c == 'G': t += 8 if first else 28
        elif c == 'W': t += 16 if prev in 'MS' else 24
        elif c == 'B': t += 28
        first = False
        if c not in 'SX' : prev = c
    return max(t, 16)

def est_cycles(seq_ins):
    out = []; cur = None
    for i in seq_ins:
        pre = ('S' if i.pre_wait else '') + 'S' * i.pre_nop
        if cur is not None: cur += pre
        if i.cls == 'M':
            if cur is not None: out.append((gap_cost(cur), cur))
            cur = ''
        elif cur is not None and i.cls != 'L': cur += i.cls
    out.append((gap_cost(cur), cur))
    return out
```

```python
import sys, math
from asmlib import *

NAME = "recurrent_scan__gqa_block_cached__dense_activation_gelu__prompt"
CQ = math.log2(math.e) / math.sqrt(128.0)
KG = math.sqrt(2.0 / math.pi)
ALPHA = -math.log2(math.e) * 2 * KG / CQ
BETA = ALPHA * 0.044715 / (CQ * CQ)

class Cfg:
    msum_qb = (1, 3)
    e0 = 37
    bar_gap = 104
    pat = 'D' * 8 + 'G.D' * 8 + 'D' * 32
    force_slow = False
    stamps = False
    pretouch = True
    verbose = False
    gmap = 2
    codetouch = True
    tstride = 128
    la = 8
    dma0 = 8
    tplan = {1: 'qw'}
    tlate = {}
    k0at = (22, 1)
    xst = ()
cfg = Cfg()

sW, sG, sQB = s(3), s(30), s(31)
SRD_X, SRD_K, SRD_V, SRD_WQ, SRD_W1, SRD_W2, SRD_WO, SRD_WS, SRD_B1 = (s(32 + 4 * i, 4) for i in range(9))
sT0, sT1, sT2, sT3 = s(68), s(69), s(70), s(71)
sSTG = s(72)
sSO = [s(73), s(74)]
sODD = s(75)
sHS = [s(76 + i) for i in range(4)]
sBETA, sCQ = s(80), s(81)
sPB = s(82)
sKO, sVO = s(83), s(84)
sKM0 = s(85)
sIT = s(86)
sSLOW = s(87)
sW2B, sWOB = s(88), s(89)
sST = [s(90), s(91)]
sLO, sHI = s(92), s(93)
sKV0 = s(94)
sIDX, sHF = s(95), s(86)
sTA, sTB = s(14), s(15)
vTID = v(0); vL16 = v(1)
vTRA = [v(2 + i) for i in range(4)]
vOW1 = [v(6 + i) for i in range(4)]
vOWQ = [v(10 + i) for i in range(4)]
vKA = [v(14 + i) for i in range(4)]
vVA = [v(18 + i) for i in range(8)]
vOK, vOV = v(26), v(27)
vOL = [v(28 + i) for i in range(4)]
QB, SB, PB, NEGM = 32, 96, 160, 224
vTRF = [v(240 + i) for i in range(4)]; vBF = [v(244), v(245)]
vHW = v(246); vXR = v(247)
vALPHA = v(248)
LSUM, ONES, LADD = 240, 248, 252
def Q(qb, st): return v(QB + 16 * qb + 4 * st, 4)
def S(kb, qb): return v(SB + 16 * kb + 4 * qb, 4)
def P(par, qb, kh): return v(PB + 32 * par + 8 * qb + 4 * kh, 4)
def O(i, qb): return a(16 * i + 4 * qb, 4)
def Kf(kb, st): return a(128 + 16 * kb + 4 * st, 4)
def Vf(i, kh): return a(192 + 8 * i + 4 * kh, 4)
def Af(par, b, kk): return a(192 + 32 * par + 8 * b + 4 * kk, 4)
def NM(qb): return v(NEGM + 4 * qb, 4)
L_V, L_K, L_STG = 0, 32768, 65536

def srd(dst, ptr, nbytes):
    return [salu('s_mov_b32', dst[0], ptr[0]), salu('s_mov_b32', dst[1], ptr[1]),
            salu('s_mov_b32', dst[2], nbytes), salu('s_mov_b32', dst[3], 0x20000)]

NSTAMP = [0]
def stamp(name, entry=False):
    if not cfg.stamps: return []
    n = NSTAMP[0]; NSTAMP[0] += 1
    STAMPS.append(name)
    rd = [raw("s_memtime s[96:97]", 'X', [], [s(96, 2)]), raw("s_memrealtime s[98:99]", 'X', [], [s(98, 2)])]
    wr = [raw(f"v_writelane_b32 v0, s96, {n}", 'V', [s(96), v(0)], [v(0)]),
          raw(f"v_writelane_b32 v0, s98, {32 + n}", 'V', [s(98), v(0)], [v(0)])]
    if entry: return rd, wr
    return rd + wr
STAMPS = []

class Stage:
    def __init__(st, kind, kp, ch, nkk=2):
        st.kind = kind; st.kp = kp; st.ch = ch; st.nkk = nkk

def stage_group(j, st, kk):
    slot = j % 3
    stride = {'w1': 3584, 'wq': 8192, 'w2': 1024, 'wo': 1024}[st.kind]
    srd_ = {'w1': SRD_W1, 'wq': SRD_WQ, 'w2': SRD_W2, 'wo': SRD_WO}[st.kind]
    vo = {'w1': vOW1, 'wq': vOWQ, 'w2': vOL, 'wo': vOL}[st.kind]
    so = sSO[kk]
    off = (64 * st.kp + 32 * kk) * stride + st.ch * 128
    if st.kind == 'w2': s1 = salu('s_add_u32', so, sW2B, off)
    elif st.kind == 'wo': s1 = salu('s_add_u32', so, sWOB, off)
    else: s1 = salu('s_mov_b32', so, off)
    s2 = salu('s_add_u32', M0, sSTG, slot * 8192 + kk * 4096)
    d = [dma(vo[u], srd_, so, u * 1024, tok=[('stg', slot, 2 * kk + u // 2)]) for u in range(4)]
    tagw(s1, (st.kind, j, kk)); tagw(s2, (st.kind, j, kk))
    for u in range(4):
        tagw(d[u], (st.kind, j, u % 2)); tagr(d[u], so, (st.kind, j, kk)); tagr(d[u], M0, (st.kind, j, kk))
    return [s1, s2], d

def stage_reads(j, st, gamma):
    slot = j % 3; kk, e = gamma // 2, gamma % 2
    ad = vTRF if st.kind == 'w1' else vTRA
    r = [ds_read('ds_read_b64_tr_b16', Af(j % 2, b, kk)[2 * e:2 * e + 2], ad[b], slot * 8192 + gamma * 2048, tok=[('stg', slot, gamma)])
         for b in range(4)]
    for i in r: tagw(i, ('A', st.kind, j)); i.ltag = (st.kind, j, 1)
    return r

def kv_group(which, slot):
    if which == 'K': so, vo, sr, base = sKO, vOK, SRD_K, L_K
    else: so, vo, sr, base = sVO, vOV, SRD_V, L_V
    sc = [salu('s_add_u32', so, so, 16384), salu('s_and_b32', so, so, 0x7ffff),
          salu('s_add_u32', M0, sKM0, base + slot * 16384)]
    d = [dma(vo, sr, so, u * 1024, tok=[(which, slot)]) for u in range(4)]
    tagw(sc[1], (which, slot)); tagw(sc[2], (which, slot))
    for i in d: tagr(i, so, (which, slot)); tagr(i, M0, (which, slot))
    return sc, d

class Sched:
    def __init__(z, tl):
        z.tl = tl; z.lastD = -1; z.lastG = -2; z.flex = []; tl.busy_sh = set()
    def D(z, lo, ins, dl=None):
        lo = max(lo, z.lastD + 1, 0)
        z.lastD = z.tl.place(lo, ins, deadline=None if dl is None else max(dl, lo)); return z.lastD
    def group(z, sc, dd, los, step=2):
        prev = z.lastG
        first = None
        for k, ins in enumerate(dd):
            lo = max(los[k] if isinstance(los, list) else los, z.lastG + (step if k else max(step, 1 + len(sc))), 1)
            z.lastG = z.tl.place(lo, ins, deadline=lo + 5)
            if first is None: first = z.lastG
        if sc: z.flex.append((sc, prev + 1, first - 1))
        return z.lastG

def place_ring(tl, z, stages, starts, blk_end, extra, kvx={}):
    NS = len(stages)
    def base(j, gamma):
        while gamma >= 4 and j + 1 < NS: j += 1; gamma -= 4
        return starts[j] + (gamma * (starts[j + 1] - starts[j])) // 4 - 4
    for f in range(NS + 4):
        for kk in range(2):
            q0 = 4 * (f - 1) + 2 * kk - cfg.la
            if q0 < -1 + 0 or q0 // 4 >= NS: continue
            if q0 < 0: continue
            j, gq = q0 // 4, q0 % 4
            if f < NS and kk < stages[f].nkk:
                sc, dd = stage_group(f, stages[f], kk)
                los = []
                for gamma in (gq, gq + 1):
                    b0, b1 = base(j, gamma), base(j, gamma + 1)
                    los += [b0 + 3, b0 + 3 + (b1 - b0) // 2]
                z.group(sc, dd, [max(x, 2) for x in los])
            for which, slot, lo in kvx.get((j, gq // 2), []):
                if which in 'KV': sc, dd = kv_group(which, slot); z.group(sc, dd, lo)
                else: z.group([], slot, lo)
    for j in range(NS):
        r = j + 1; ex = extra.get(j, []); nex = len(ex)
        for gamma in range(4):
            rds = stage_reads(r, stages[r], gamma) if r < NS and gamma < 2 * stages[r].nkk else []
            lst = [(ins, blk_end.get((j - 1, b), 0)) for b, ins in enumerate(rds)]
            lst += [(i, max(lo, starts[j] - 1)) for i, lo in ex[(gamma * nex) // 4:((gamma + 1) * nex) // 4]]
            b1 = base(j, gamma + 1) if not (j == NS - 1 and gamma == 3) else starts[NS] - 4
            av = [g for g in range(max(base(j, gamma), 0), b1) if tl.used(g) == 0]
            for k, (ins, lo) in enumerate(lst):
                g = av[(k * len(av)) // len(lst)]
                if g < lo:
                    c = [x for x in av if x >= lo]
                    g = min(c, key=lambda x: (tl.used(x), x)) if c else lo
                tl.put(g, ins); z.lastD = max(z.lastD, g)

def place_flex(tl, flex):
    def wrap(g): return g % tl.n() if tl.cyclic else g
    for sc, lo, hi in flex:
        lo = max(lo, 0)
        assert hi >= lo, (sc, lo, hi)
        cand = [g for g in range(lo, hi + 1) if not any(i.cls == 'G' for i in tl.gap[wrap(g)])]
        assert cand, (sc, lo, hi)
        def load(g):
            k = len(tl.sh[wrap(g)]) + (wrap(g) in tl.busy_sh)
            return max(0, k + 1 + tl.used(wrap(g)) - 3) if k else 0
        pick = sorted(sorted(cand, key=lambda g: (load(g), -g))[:len(sc)])
        while len(pick) < len(sc): pick.append(pick[-1])
        for ins, g in zip(sc, pick): tl.put(g, ins)

def mark_busy(tl):
    tl.busy_sh = set()
    for g in range(tl.n()):
        nxt = tl.sh[g] + tl.gap[g] + ([tl.m[g + 1]] if g + 1 < tl.n() else [])
        if nxt and nxt[0].pre_wait: tl.busy_sh.add(g)

def touch(dst, voff, srd_, so, off=0): return bload('buffer_load_dword', dst, voff, srd_, so, off)

def k1_prologue(stages):
    o = []; A = o.append; E = o.extend
    A(scmp('s_cmp_ge_u32', s(2), 256)); A(branch('s_cbranch_scc1', 'L_end'))
    entry_wr = []
    if cfg.stamps:
        rd, entry_wr = stamp('entry', True); E(rd)
    A(sload('s_load_dwordx16', s(4, 16), s(0, 2), 0))
    A(sload('s_load_dwordx8', s(20, 8), s(0, 2), 64))
    A(sload('s_load_dwordx2', s(28, 2), s(0, 2), 96))
    vl, vc, vt, vx = v(232), v(233), v(234), v(235)
    t0, t1, t2, t3 = v(236), v(237), v(238), v(239)
    NSH = 32 // cfg.gmap
    A(valu('v_lshrrev_b32', t0, 6, vTID))
    A(valu('v_and_b32', vl, 63, vTID))
    A(valu('v_readfirstlane_b32', sW, t0))
    A(valu('v_and_b32', vc, 15, vl)); A(valu('v_lshrrev_b32', vt, 4, vl))
    A(valu('v_lshlrev_b32', vL16, 4, vl))
    if cfg.gmap == 1:
        A(salu('s_and_b32', sG, s(2), 7)); A(salu('s_lshr_b32', sQB, s(2), 3)); A(salu('s_mov_b32', sIDX, sQB)); A(salu('s_mov_b32', sHF, 0))
    else:
        A(salu('s_bfe_u32', sHF, s(2), 0x10003)); A(salu('s_and_b32', sG, s(2), 3)); A(salu('s_lshl_b32', sG, sG, 1)); A(salu('s_add_u32', sG, sG, sHF))
        A(salu('s_lshr_b32', sIDX, s(2), 4)); A(salu('s_and_b32', sT0, s(2), 4)); A(salu('s_lshl_b32', sT0, sT0, 2)); A(salu('s_add_u32', sQB, sIDX, sT0))
    xr, xt = v(230), v(231)
    A(valu('v_lshrrev_b32', xr, 2, vl)); A(valu('v_and_b32', xt, 3, vl))
    A(valu('v_lshlrev_b32', vx, 10, xr)); A(valu('v_lshl_add_u32', vx, xt, 4, vx))
    sXA, sXB = sST
    A(salu('s_lshl_b32', sT0, sQB, 16)); A(salu('s_lshl_b32', sT1, sW, 14)); A(salu('s_add_u32', sT0, sT0, sT1))
    A(salu('s_lshl_b32', sT1, sHF, 9)); A(salu('s_add_u32', sXA, sT0, sT1)); A(salu('s_xor_b32', sXB, sXA, 512))
    A(salu('s_and_b32', sODD, sW, 1))
    A(salu('s_lshr_b32', sT2, sW, 1)); A(salu('s_mul_i32', sT2, sT2, 7)); A(salu('s_mul_i32', sT3, sODD, 3)); A(salu('s_add_u32', sT2, sT2, sT3))
    for b in range(4):
        A(salu('s_add_u32', sT0, sODD, b)); A(salu('s_and_b32', sT0, sT0, 3)); A(salu('s_add_u32', sHS[b], sT0, sT2))
    A(valu('v_lshlrev_b32', t3, 3, vt))
    A(valu('v_lshrrev_b32', t1, 3, vTID)); A(valu('v_and_b32', t1, 512 // NSH - 1, t1)); A(valu('v_mul_u32_u24', t2, 3584, t1))
    A(valu('v_and_b32', t0, 7, vTID)); A(valu('v_lshl_add_u32', t2, t0, 6, t2))
    A(salu('s_mul_i32', sT2, sIDX, 512 // NSH * 3584)); A(salu('s_mul_i32', sT1, sG, 448)); A(salu('s_add_u32', sT2, sT2, sT1))
    if cfg.codetouch:
        A(salu('s_getpc_b64', s(100, 2)))
        A(salu('s_lshr_b32', sT0, s(2), 3)); A(salu('s_lshl_b32', sT0, sT0, 11)); A(salu('s_lshl_b32', sT3, sW, 9)); A(salu('s_add_u32', sT0, sT0, sT3))
        A(valu('v_and_b32', t0, 7, vl)); A(valu('v_lshlrev_b32', t0, 6, t0)); A(valu('v_add_u32', t0, sT0, t0))
        A(raw("v_min_u32 v236, L_codeend-L_codebeg-1024, v236", 'V', [t0], [t0]))
        A(I(f"global_load_dword a79, {t0}, s[100:101]", 'G', flat(t0, s(100, 2)), flat(a(79)), sub='load'))
    E(srd(SRD_X, s(4, 2), 2048 * 512 * 2)); E(srd(SRD_W1, s(16, 2), 512 * 1792 * 2))
    def xload(k): return bload('buffer_load_dwordx4', v(QB + 4 * k, 4), vx, SRD_X, sXA if k < 8 else sXB, (k % 8) * 64)
    if cfg.pretouch: A(touch(a(72), t2, SRD_W1, sT2))
    for k in range(8): A(xload(k))
    E(srd(SRD_B1, s(18, 2), 1792 * 2))
    for b in range(4):
        A(salu('s_lshl_b32', sT3, sHS[b], 5)); A(salu('s_add_u32', sT3, sT3, sT1))
        A(bload('buffer_load_dwordx2', a(64 + 2 * b, 2), t3, SRD_B1, sT3))
    rr, sc_, nat = v(228), v(229), v(225)
    A(valu('v_lshrrev_b32', rr, 3, vl))
    A(valu('v_and_b32', t0, 7, vl)); A(valu('v_lshlrev_b32', t1, 1, vt)); A(valu('v_xor_b32', sc_, t0, t1))
    A(valu('v_lshlrev_b32', sc_, 4, sc_))
    A(valu('v_xor_b32', t0, t1, vl)); A(valu('v_lshlrev_b32', vXR, 4, t0))
    A(valu('v_and_b32', t0, 4, rr)); A(valu('v_add_u32', nat, t0, rr))
    A(salu('s_lshr_b32', sT2, sW, 1)); A(salu('s_mul_i32', sT2, sT2, 224))
    A(salu('s_mul_i32', sT3, sODD, 96)); A(salu('s_add_u32', sT2, sT2, sT3)); A(salu('s_add_u32', sT1, sT1, sT2))
    A(valu('v_mul_u32_u24', t0, 3584, nat)); A(valu('v_add3_u32', t0, t0, sc_, sT1))
    rowoff = [0, 16, 4, 20]
    for u in range(4): A(valu('v_add_u32', vOW1[u], rowoff[u] * 3584 - u * 1024, t0))
    A(salu('s_mul_i32', sSTG, sW, 24576)); A(salu('s_add_u32', sSTG, sSTG, L_STG))
    E(srd(SRD_WQ, s(10, 2), 512 * 4096 * 2))
    lp, key = v(226), v(227)
    A(valu('v_lshlrev_b32', lp, 7, xr)); A(valu('v_lshl_add_u32', lp, xt, 3, lp)); A(valu('v_add_u32', lp, sSTG, lp))
    A(valu('v_and_b32', key, 3, rr))
    for b in range(4):
        A(valu('v_xor_b32', t0, b, key)); A(valu('v_lshl_add_u32', vTRA[b], t0, 5, lp))
        A(salu('s_add_u32', sT0, sODD, b)); A(salu('s_and_b32', sT0, sT0, 3))
        A(valu('v_xor_b32', t0, sT0, key)); A(valu('v_lshl_add_u32', vTRF[b], t0, 5, lp))
        A(salu('s_lshr_b32', sT1, sHS[b], 1)); A(salu('s_lshl_b32', sT1, sT1, 12))
        A(salu('s_and_b32', sT3, sHS[b], 1)); A(salu('s_lshl_b32', sT3, sT3, 3)); A(salu('s_add_u32', sHS[b], sT1, sT3))
    A(salu('s_lshl_b32', sT0, sODD, 11)); A(valu('v_add_u32', vBF[0], sT0, vXR))
    A(salu('s_xor_b32', sT0, sT0, 2048)); A(valu('v_add_u32', vBF[1], sT0, vXR))
    A(salu('s_lshl_b32', sT1, sG, 10)); A(salu('s_lshl_b32', sT2, sW, 8)); A(salu('s_add_u32', sT1, sT1, sT2))
    A(valu('v_lshlrev_b32', t0, 13, nat)); A(valu('v_add3_u32', t0, t0, sc_, sT1))
    for u in range(4): A(valu('v_add_u32', vOWQ[u], rowoff[u] * 8192 - u * 1024, t0))
    A(valu('v_lshlrev_b32', t0, 10, rr)); A(valu('v_add3_u32', t0, t0, sc_, sT2))
    for u in range(4): A(valu('v_add_u32', vOL[u], u * 7168, t0))
    A(salu('s_mul_i32', sW2B, sG, 224 * 1024)); A(salu('s_lshl_b32', sWOB, sG, 19))
    E(srd(SRD_K, s(6, 2), 8 * 2048 * 128 * 2)); E(srd(SRD_V, s(8, 2), 8 * 2048 * 128 * 2))
    E(srd(SRD_W2, s(20, 2), 1792 * 512 * 2)); E(srd(SRD_WO, s(12, 2), 4096 * 512 * 2))
    E(srd(SRD_WS, s(28, 2), 1 << 28))
    A(salu('s_lshl_b32', sKM0, sW, 12)); A(salu('s_add_u32', sT0, sWOB, sKM0))
    A(salu('s_lshl_b32', sT1, sW, 2)); A(valu('v_add_u32', t0, sT1, vt)); A(valu('v_xor_b32', t0, t0, vc))
    A(valu('v_lshlrev_b32', t1, 8, vt)); A(valu('v_lshl_add_u32', t0, t0, 4, t1)); A(valu('v_add_u32', vOK, sT0, t0))
    A(salu('s_lshl_b32', sT1, sODD, 2)); A(valu('v_add_u32', t0, sT1, vt)); A(valu('v_lshlrev_b32', t0, 1, t0)); A(valu('v_xor_b32', t0, t0, vc))
    A(valu('v_lshl_add_u32', t0, t0, 4, t1)); A(valu('v_add_u32', vOV, sT0, t0))
    A(valu('v_lshrrev_b32', t0, 2, vc)); A(valu('v_lshlrev_b32', t1, 12, t0))
    A(valu('v_lshl_add_u32', t1, xt, 8, t1)); A(valu('v_add_u32', t1, L_K, t1))
    A(valu('v_lshrrev_b32', t3, 1, vt)); A(valu('v_and_b32', key, 1, vt)); A(valu('v_lshl_add_u32', t3, key, 1, t3))
    A(valu('v_xor_b32', t3, t3, vc))
    for st_ in range(4):
        A(valu('v_xor_b32', lp, 4 * st_, t3)); A(valu('v_lshl_add_u32', vKA[st_], lp, 4, t1))
    A(valu('v_lshl_add_u32', t1, vt, 4, t0)); A(valu('v_lshlrev_b32', t1, 8, t1)); A(valu('v_lshl_add_u32', t1, xt, 3, t1))
    A(valu('v_lshl_add_u32', t3, key, 2, t0))
    for i in range(8):
        A(valu('v_xor_b32', lp, i, t3)); A(valu('v_lshl_add_u32', vVA[i], lp, 5, t1))
    wa, wb = vHW, v(255)
    A(valu('v_lshlrev_b32', t0, 1, xt)); A(valu('v_xor_b32', t0, t0, xr)); A(valu('v_lshl_add_u32', t0, xt, 4, t0)); A(valu('v_lshlrev_b32', t0, 4, t0))
    A(salu('s_lshl_b32', sT0, sW, 10)); A(salu('s_lshl_b32', sT1, sHF, 15)); A(salu('s_add_u32', sT0, sT0, sT1))
    A(valu('v_add_u32', wa, sT0, t0)); A(valu('v_xor_b32', wb, 32768, wa))
    A(salu('s_mov_b32', sBETA, BETA)); A(salu('s_mov_b32', sCQ, CQ))
    A(salu('s_lshl_b32', sPB, sG, 21)); A(salu('s_lshl_b32', sT0, sQB, 16)); A(salu('s_add_u32', sPB, sPB, sT0))
    A(salu('s_lshl_b32', sT0, sW, 14)); A(salu('s_add_u32', sPB, sPB, sT0))
    A(salu('s_mul_i32', sKV0, sIDX, 16384 * cfg.gmap)); A(salu('s_sub_u32', sKV0, sKV0, 16384))
    A(salu('s_mov_b32', sKO, sKV0)); A(salu('s_mov_b32', sVO, sKV0))
    A(salu('s_mov_b32', sSLOW, 0))
    A(salu('s_mov_b32', sLO, 0x00003f80)); A(salu('s_mov_b32', sHI, 0x3f800000))
    tq, tw, tk = v(249), v(250), v(251)
    TS = cfg.tstride
    per = 1024 // TS
    A(valu('v_lshrrev_b32', t0, int(math.log2(per)), vTID)); A(valu('v_lshlrev_b32', t0, 13, t0))
    A(valu('v_and_b32', t1, per - 1, vTID)); A(valu('v_mul_u32_u24', t1, TS, t1)); A(valu('v_add_u32', t0, t0, t1))
    A(salu('s_mul_i32', sT0, sIDX, 512 // NSH * 8192)); A(salu('s_lshl_b32', sT1, sG, 10)); A(salu('s_add_u32', sT0, sT0, sT1))
    A(valu('v_add_u32', tq, sT0, t0))
    A(valu('v_mul_u32_u24', t0, 28 * cfg.gmap, vTID)); A(salu('s_mul_i32', sT0, sIDX, 7168 * cfg.gmap)); A(salu('s_add_u32', sT0, sT0, sW2B))
    A(valu('v_add_u32', tw, sT0, t0))
    A(valu('v_mul_u32_u24', t0, TS, vTID)); A(salu('s_mul_i32', sT0, sIDX, 16384 * cfg.gmap)); A(salu('s_add_u32', sT0, sT0, sWOB))
    A(valu('v_add_u32', tk, sT0, t0))
    nrep = (16384 * cfg.gmap) // (256 * TS)
    tch = {'q': [], 'w': [], 'k': [], 'v': []}
    A(salu('s_mov_b32', sTA, (256 // per) * 8192)); A(salu('s_mov_b32', sTB, 256 * TS))
    assert nrep in (1, 2) or (nrep == 0)
    for r_ in range(max(nrep, 1)):
        tch['q'].append(touch(a(73), tq, SRD_WQ, sTA if r_ else 0))
        tch['k'].append(touch(a(75), tk, SRD_K, sTB if r_ else 0)); tch['v'].append(touch(a(76), tk, SRD_V, sTB if r_ else 0))
    tch['w'].append(touch(a(74), tw, SRD_W2, 0))
    E(entry_wr); E(stamp('setup'))
    for k in range(8, 16): A(xload(k))
    groups = []
    for j in range(3):
        for kk in range(2):
            if 4 * (j - 1) + 2 * kk - cfg.la < 0:
                sc, dd = stage_group(j, stages[j], kk); groups.append(sc + dd[:1]); groups += [[d] for d in dd[1:]]
        if cfg.pretouch:
            for ch_ in cfg.tplan.get(j, ''): groups += [[x_] for x_ in tch[ch_]]
    nm = v(232); D0 = SB
    A(valu('v_lshlrev_b32', nm, 16, v(QB))); A(valu('v_xor_b32', nm, 0x80000000, nm)); A(dpp('v_mov_b32', nm, nm, None, [0, 0, 0, 0]))
    s1 = [v(224, 2), v(226, 2)]; s2 = [v(228, 2), v(230, 2)]
    for st_ in range(16):
        for k in range(4 * st_, 4 * st_ + 4):
            A(valu('v_dot2_f32_bf16', v(D0 + 2 * k), v(QB + k), sLO, nm))
            A(valu('v_dot2_f32_bf16', v(D0 + 2 * k + 1), v(QB + k), sHI, nm))
        for k in range(4 * st_, 4 * st_ + 4):
            d = v(D0 + 2 * k, 2)
            if k < 2: A(valu('v_pk_mul_f32', s2[k], d, d))
            else: A(valu('v_pk_fma_f32', s2[k % 2], d, d, s2[k % 2]))
        for k in range(4 * st_, 4 * st_ + 4):
            d = v(D0 + 2 * k, 2)
            if k in (2, 3): A(valu('v_pk_add_f32', s1[k % 2], d, v(D0 + 2 * (k - 2), 2)))
            elif k > 3: A(valu('v_pk_add_f32', s1[k % 2], d, s1[k % 2]))
        if st_ >= cfg.dma0 and groups: E(groups.pop(0))
    E(stamp('x_in'))
    A(valu('v_pk_add_f32', s1[0], s1[0], s1[1])); A(valu('v_pk_add_f32', s2[0], s2[0], s2[1]))
    a1, a2 = v(224), v(228)
    A(valu('v_add_f32', a1, v(224), v(225))); A(valu('v_add_f32', a2, v(228), v(229)))
    for perm in ([1, 0, 3, 2], [2, 3, 0, 1]):
        A(dpp('v_add_f32', a1, a1, a1, perm)); A(dpp('v_add_f32', a2, a2, a2, perm))
    A(valu('v_mul_f32', a1, 1.0 / 512, a1))
    A(valu('v_mov_b32', v(226), 1e-5)); A(valu('v_fmac_f32', v(226), 1.0 / 512, a2))
    A(raw("v_fma_f32 v226, -v224, v224, v226", 'V', [v(224), v(226)], [v(226)]))
    A(valu('v_max_f32', v(226), 1e-5, v(226)))
    A(valu('v_rsq_f32', v(226), v(226))); A(valu('v_mul_f32', v(226), sCQ, v(226))); A(valu('v_mov_b32', v(227), v(226)))
    A(raw("v_mul_f32 v228, -v224, v226", 'V', [v(224), v(226)], [v(228)])); A(valu('v_mov_b32', v(229), v(228)))
    for st_ in range(16):
        for k in range(4 * st_, 4 * st_ + 4):
            A(valu('v_pk_fma_f32', v(D0 + 2 * k, 2), v(D0 + 2 * k, 2), v(226, 2), v(228, 2)))
        for k in range(4 * st_, 4 * st_ + 4):
            A(valu('v_cvt_pk_bf16_f32', v(QB + k), v(D0 + 2 * k), v(D0 + 2 * k + 1)))
        A(ds_write('ds_write_b128', wa if st_ < 8 else wb, v(QB + 4 * st_, 4), (st_ % 8) * 4096, tok=[('xq',)]))
        if groups: E(groups.pop(0))
    tmp = [v(D0 + k) for k in range(8)]
    for k in range(8): A(valu('v_accvgpr_read_b32', tmp[k], a(64 + k)))
    for k in range(8):
        A(valu('v_lshlrev_b32', v(NEGM + 2 * k), 16, tmp[k])); A(valu('v_and_b32', v(NEGM + 2 * k + 1), 0xffff0000, tmp[k]))
    for k in range(8): A(valu('v_pk_mul_f32', v(NEGM + 2 * k, 2), v(NEGM + 2 * k, 2), s(80, 2), mods="op_sel:[0,1] op_sel_hi:[1,1]"))
    A(valu('v_mov_b32', vALPHA, ALPHA))
    A(barrier(need=[('xq',)]))
    for g_ in range(4): E(stage_reads(0, stages[0], g_))
    for gr in groups: E(gr)
    E(stamp('ln_done'))
    return o, tch

def Bx(kp, kk, qb): return a(32 * (kp % 2) + 16 * kk + 4 * qb, 4)
def Hf(st_, qb): return a({0: 0, 1: 16, 2: 64, 3: 80, 4: 96, 5: 112, 6: 32}[st_] + 4 * qb, 4)
def Hacc(b, qb): return v(SB + 16 * b + 4 * qb, 4)
def Qacc(i, qb): return Q(qb, i // 2) if i % 2 == 0 else v(PB + 16 * qb + 4 * (i // 2), 4)
def Zacc(ch, b, qb):
    if ch == 0: return v(SB + 32 * (b % 2) + 16 * (b // 2) + 4 * qb, 4)
    return v(PB + 32 * (1 - b % 2) + 16 * (b // 2) + 4 * qb, 4)

def pack_store(tl, z, acc, ch, ready, kind, dl=None):
    last = 0
    for bp in range(2):
        so = sST[bp]
        sc = tagw(salu('s_add_u32', so, sPB, kind * (1 << 24) + (ch * 8 + bp * 4) * 1024), (kind, ch, bp))
        first = None
        for qb in range(4):
            e, o_ = acc(ch, 2 * bp, qb), acc(ch, 2 * bp + 1, qb)
            g = max(ready(2 * bp, qb), last)
            tg = ('acc', 'w2' if kind else 'wo')
            def cv(d, src, k): return tagw(tagr(valu('v_cvt_pk_bf16_f32', d, src[k], src[k + 1]), src[k:k + 2], tg), 'pk')
            g = tl.place(g, cv(e[0], e, 0), dl)
            g = tl.place(g, cv(e[1], e, 2), dl)
            g = max(g, ready(2 * bp + 1, qb))
            g = tl.place(g, cv(e[2], o_, 0), dl)
            last = g = tl.place(g, cv(e[3], o_, 2), dl)
            g = tl.place(g + 1, tagr(tagr(bstore('buffer_store_dwordx4', e, vL16, SRD_WS, so, qb * 1024), e, 'pk'), so, (kind, ch, bp)), None if dl is None else dl + 8)
            if first is None: first = g
        z.flex.append(([sc], max(first - 6, 0), first - 1))
    return last

def y_order():
    ms = [('m', qb, kh) for qb in cfg.msum_qb for kh in range(2)]
    pv = [('p', i, qb, kh) for i in range(8) for qb in range(4) for kh in range(2)]
    return ms + pv
def x_mfmas(par=None):
    o = []
    for kb in range(4):
        for qb in range(4):
            for st_ in range(4):
                m_ = mfma(S(kb, qb), Kf(kb, st_), Q(qb, st_), NM(qb) if st_ == 0 else S(kb, qb))
                if par is not None:
                    tagr(m_, Kf(kb, st_), ('Kf', 1 - par)); tagr(m_, Q(qb, st_), 'Q'); tagw(m_, ('S', par, st_))
                    if st_: tagr(m_, S(kb, qb), ('S', par, st_ - 1))
                o.append(m_)
    return o
def y_mfma(y, par, first):
    if y[0] == 'm':
        _, qb, kh = y; acc = v(LSUM + 4 * cfg.msum_qb.index(qb), 4)
        return mfma(acc, v(ONES, 4), P(par, qb, kh), 0 if first and kh == 0 else acc)
    _, i, qb, kh = y
    return tagr(tagr(mfma(O(i, qb), Vf(i, kh), P(par, qb, kh), 0 if first and kh == 0 else O(i, qb)), Vf(i, kh), ('Vf', par)), P(par, qb, kh), 'P')
ADDQ = None
def item(kind, idx, par):
    if kind == 'bar': return barrier(need=[('K', par), ('V', 1 - par)], free=[('K', 1 - par), ('V', par)])
    if kind == 'exp':
        kb, qb, r = idx; return tagw(tagr(valu('v_exp_f32', S(kb, qb)[r], S(kb, qb)[r]), S(kb, qb)[r], ('S', par, 3)), ('E', par))
    if kind == 'add':
        kb, qb, r = idx; l = v(LADD + 2 * ADDQ.index(qb) + r % 2); return tagr(valu('v_add_f32', l, S(kb, qb)[r], l), S(kb, qb)[r], ('E', par))
    if kind == 'cvt':
        kb, qb, h = idx
        return tagw(tagr(valu('v_cvt_pk_bf16_f32', P(1 - par, qb, kb // 2)[2 * (kb % 2) + h], S(kb, qb)[2 * h], S(kb, qb)[2 * h + 1]), S(kb, qb)[2 * h:2 * h + 2], ('E', par)), 'P')
    if kind == 'kr':
        kb, st_ = idx; return tagw(ds_read('ds_read_b128', Kf(kb, st_), vKA[st_], par * 16384 + kb * 1024, tok=[('K', par)]), ('Kf', par))
    if kind == 'vr':
        i, kh, e = idx
        return tagw(ds_read('ds_read_b64_tr_b16', Vf(i, kh)[2 * e:2 * e + 2], vVA[i], (1 - par) * 16384 + (8 * kh + 4 * e) * 256, tok=[('V', 1 - par)]), ('Vf', 1 - par))
    if kind == 'kd': return kv_group('K', 1 - par)[1][idx]
    if kind == 'vd': return kv_group('V', par)[1][idx]
    if kind == 'ks': return kv_group('K', 1 - par)[0][idx]
    if kind == 'vs': return kv_group('V', par)[0][idx]
    raise KeyError(kind)

def steady_schedule(busy=()):
    global ADDQ
    ADDQ = [q for q in range(4) if q not in cfg.msum_qb]
    tl = Timeline(cyclic=True)
    for m in x_mfmas(): tl.add(m)
    for y in y_order(): tl.add(y_mfma(y, 0, False))
    N = tl.n(); items = []
    def pl(g, kind, idx, dl=None):
        g = tl.place(g, item(kind, idx, 0), dl); items.append((g, kind, idx)); return g
    ex = [(kb, qb, r) for kb in range(4) for qb in range(4) for r in range(4)]
    eg = {}
    for k, e in enumerate(ex): eg[e] = pl(cfg.e0 + (k * N) // 64, 'exp', e)
    B = pl(cfg.bar_gap, 'bar', 0)
    nm_ = 2 * len(cfg.msum_qb)
    rd = [('kr', (kb, st_)) for kb in range(4) for st_ in range(4)] + [('vr', (i, kh, e)) for i in range(8) for kh in range(2) for e in range(2)]
    dm = [('kd', u) for u in range(4)] + [('vd', u) for u in range(4)]
    free = [g for g in range(B + 1, B + N) if tl.used(g % N) == 0]
    nfree = len(free) - 56
    pat = cfg.pat
    assert pat.count('D') == 48 and pat.count('G') == 8 and len(pat) <= len(free), (pat.count('D'), pat.count('G'), len(pat), len(free))
    gk = []; gv = []
    for g, ch in zip(free, pat):
        if ch == 'D':
            kind, idx = rd.pop(0); pl(g, kind, idx); last = g
            if kind == 'kr': assert g <= N + 16 * idx[0] - 5, (idx, g)
            else: assert 64 + nm_ + 8 * idx[0] + 8 <= g <= N + 64 + 8 * idx[0], (idx, g)
        elif ch == 'G':
            kind, idx = dm.pop(0); pl(g, kind, idx); (gk if kind == 'kd' else gv).append(g)
    assert last < B + N - 3, last
    vs = []
    for (kb, qb, r) in ex:
        if r % 2: vs.append((eg[(kb, qb, r)] + 1, 'cvt', (kb, qb, r // 2)))
        if qb in ADDQ: vs.append((eg[(kb, qb, r)] + 1, 'add', (kb, qb, r)))
    cap = [2 - tl.used(g) for g in range(N)]
    assert sum(cap) >= len(vs), (sum(cap), len(vs))
    fifo = []; asg = {}
    allv = sorted([(g0 + p_ * N, p_, k) for p_ in range(5) for k, (g0, _, _) in enumerate(vs)])
    ptr = 0
    for t in range(7 * N):
        while ptr < len(allv) and allv[ptr][0] <= t: fifo.append(allv[ptr]); ptr += 1
        for _ in range(cap[t % N]):
            if fifo:
                _, p_, k = fifo.pop(0); asg[(p_, k)] = t - p_ * N
    for k, (g0, kind, idx) in enumerate(vs):
        g = asg[(3, k)]; assert g == asg[(2, k)]
        tl.put(g, item(kind, idx, 0)); items.append((g, kind, idx))
        assert g < N + 16 * idx[0] + 4 * idx[1] - 1 and g < N + 62, (kind, idx, g)
    tl.busy_sh = set(busy)
    def plsc(kind, n, lo, hi):
        ins = [item(kind, k, 0) for k in range(n)]
        place_flex(tl, [(ins, lo, hi)])
        for k, i in enumerate(ins): items.append((i.at, kind, k))
    plsc('ks', 3, gk[0] - 12, gk[0] - 1)
    plsc('vs', 3, gk[3] + 1, gv[0] - 1)
    return N, items, tl.overflow()

def add_iter(tl, N, items, par, first=False, skip_own=(), skip_late=()):
    g0 = tl.n()
    for m in x_mfmas(par): tl.add(m)
    for y in y_order(): tl.add(y_mfma(y, par, first))
    for g, kind, idx in items:
        if g >= N and kind not in skip_late: tl.put(g0 + g - N, item(kind, idx, 1 - par))
    for g, kind, idx in items:
        if g < N and kind not in skip_own: tl.put(g0 + g, item(kind, idx, par))
    return g0

def attn_init():
    o = [valu('v_mov_b32', v(LADD + k), 0) for k in range(4)]
    return o
def ones_init():
    t = v(ONES)
    return [valu('v_and_b32', t, 0x30, vL16), raw(f"v_cmp_eq_u32 vcc, 0, {t}", 'V', [t], [VCC]),
            valu('v_mov_b32', v(ONES + 1), 0x3f803f80), valu('v_cndmask_b32', t, 0, v(ONES + 1))] + \
           [valu('v_mov_b32', v(ONES + k), t) for k in range(1, 4)]

def add_xm1(tl, z, N, items, vlo=0):
    g0 = tl.n()
    for m in x_mfmas(1): tl.add(m)
    return g0
def fill_xm1(tl, z, g0, N, items, cvt_lo):
    B = [g for g, k, i in items if k == 'bar'][0]
    sh = g0 + 64 - N
    own = sorted([it for it in items if it[0] < N], key=lambda t: t[0])
    end = g0 + 63
    gb = tl.place(B + sh, item('bar', 0, 1), B + sh + 2)
    lastG = gb; pend = {'ks': [], 'vs': []}
    for g, kind, idx in own:
        if kind in ('kd', 'vd'):
            lo = max(g + sh, lastG + (4 if idx == 0 else 2))
            gg = tl.place(lo, item(kind, idx, 1), min(lo + 3, end))
            if idx == 0:
                k2 = kind[0] + 's'
                z.flex.append(([item(k2, k, 1) for k in range(3)], max(lastG, z.lastG) + 1, gg - 1))
            lastG = gg
    for k2 in ('ks', 'vs'):
        early = [idx for g, kind, idx in own if kind == k2]
        if early and not any(kind == k2[0] + 'd' and idx == 0 for g, kind, idx in own):
            z.flex.append(([item(k2, k, 1) for k in sorted(early)], lastG + 1, end))
        elif any(kind == k2[0] + 'd' and idx == 0 for g, kind, idx in own): assert len(early) == 3
    z.lastD = max(z.lastD, gb)
    for g, kind, idx in own:
        if kind == 'kr':
            z.D(max(g + sh, g0 + 16 * idx[0] + 16), item(kind, idx, 1), end)
        assert kind != 'vr'
    eg = {}; last = g0
    for g, kind, idx in own:
        if kind == 'exp':
            lo = max(g0 + 16 * idx[0] + 4 * idx[1] + 7, last)
            last = eg[idx] = tl.place(min(lo, end - 1), item(kind, idx, 1), end - 1)
    for g, kind, idx in own:
        if kind == 'add': tl.place(eg[idx] + 1, item(kind, idx, 1), end)
        if kind == 'cvt': tl.place(max(eg[(idx[0], idx[1], 2 * idx[2] + 1)] + 1, cvt_lo), item(kind, idx, 1), end)

def build_k1():
    stages = {}
    j = 0
    for kp in range(8): stages[j] = Stage('w1', kp, 0); j += 1
    for kp in range(8):
        for ch in range(2): stages[j] = Stage('wq', kp, ch); j += 1
    for ch in range(2):
        for kp in range(4): stages[j] = Stage('w2', kp, ch, 2 if kp < 3 else 1); j += 1
    NS1 = j
    pro1, tch = k1_prologue(stages); pro2 = []

    N, items, ovf = steady_schedule()
    tl = Timeline(); z = Sched(tl)
    starts = {}; blk_end = {}; done = {}
    for j in range(NS1):
        st = stages[j]; starts[j] = tl.n()
        for b in range(4):
            for qb in range(4):
                if st.kind == 'w1' and b == 3 and qb >= 2: continue
                for kk in range(st.nkk):
                    first = st.kp == 0 and kk == 0
                    if st.kind == 'w1': d = Hacc(b, qb); B_ = Bx(st.kp, kk, qb); c = NM(b) if first else d
                    elif st.kind == 'wq': d = Qacc(4 * st.ch + b, qb); B_ = Bx(st.kp, kk, qb); c = 0 if first else d
                    else: d = Zacc(st.ch, b, qb); B_ = Hf(2 * st.kp + kk, qb); c = 0 if first else d
                    m_ = mfma(d, Af(j % 2, b, kk), B_, c)
                    tagr(m_, Af(j % 2, b, kk), ('A', st.kind, j)); tagr(m_, B_, ('B', st.kind, 2 * st.kp + kk))
                    tagw(m_, ('acc', st.kind))
                    if not first: tagr(m_, d, ('acc', st.kind))
                    g = tl.add(m_)
                done[(st.kind, st.ch, b, qb)] = g
            blk_end[(j, b)] = tl.n() - 1
    starts[NS1] = tl.n()
    gX = add_xm1(tl, z, N, items)
    gBm = starts[8 + 8] + 6
    gBq = starts[8 + 14] + 8
    gB2 = starts[NS1] - 56
    tl.put(gBm, barrier(free=[('xq',)]))
    tl.put(gBq, barrier(need=[('H',)], free=[('xq',)]))
    tl.put(gB2, barrier(need=[('K', 0)], free=[('H',)]))
    pre = []
    def bread(kind, kp, kk, qb):
        st_ = 2 * kp + kk
        if kind == 'w1': return tagw(ds_read('ds_read_b128', Bx(kp, kk, qb), vBF[qb // 2], st_ * 4096 + (qb % 2) * 1024, tok=[('xq',)]), ('B', kind, st_))
        return tagw(ds_read('ds_read_b128', Bx(kp, kk, qb), vXR, st_ * 4096 + qb * 1024, tok=[('xq',)]), ('B', kind, st_))
    for qb in range(4):
        for kk in range(2): pre.append(bread('w1', 0, kk, qb))
    extra = {j: [] for j in range(NS1)}
    for j in range(7): extra[j] = [(bread('w1', j + 1, kk, qb), 0) for qb in range(4) for kk in range(2)]
    extra[7] = [(bread('wq', 0, kk, qb), 0) for qb in range(4) for kk in range(2)]
    for kp in range(7):
        rs = [(bread('wq', kp + 1, kk, qb), 0) for qb in range(4) for kk in range(2)]
        extra[8 + 2 * kp] = rs[:4]; extra[9 + 2 * kp] = rs[4:]
    def hread(st_, qb): return tagw(ds_read('ds_read_b128', Hf(st_, qb), vXR, st_ * 4096 + qb * 1024, tok=[('H',)]), ('B', 'w2', st_))
    hr = [(hread(2 * kp + kk, qb), gBq + 1) for kp in range(3) for qb in range(4) for kk in range(2)] + [(hread(6, qb), starts[24]) for qb in range(4)]
    extra[22] = hr[:3]; extra[23] = hr[3:8]; extra[24] = hr[8:16]; extra[25] = hr[16:24]; extra[26] = hr[24:28]
    kr0 = [(item('kr', (kb, st_), 0), gB2 + 1) for kb in range(4) for st_ in range(4)]
    extra[30] = kr0[:6]; extra[31] = kr0[6:12]
    kvx = {cfg.k0at: [('K', 0, gBq + 1)], (29, 1): [('K', 1, gB2 + 1), ('V', 0, gB2 + 1)]}
    if cfg.pretouch:
        for j_, t_ in cfg.tlate.items(): kvx.setdefault((j_, 0), []).extend(('t', tch[c_], 0) for c_ in t_)
    place_ring(tl, z, stages, starts, blk_end, extra, kvx)
    for ins, lo in kr0[12:]: z.D(gX, ins, gX + 20)
    tmps = [v(249 + k) for k in range(7)]
    tfree = [0] * 7; n_el = 0
    g_lo = starts[8]; g_hi = gBq - 8
    els = [(b, qb) for b in range(4) for qb in range(4) if not (b == 3 and qb >= 2)]
    tot = len(els) * 4
    lastw = gBm
    for (b, qb) in els:
        h = Hacc(b, qb); fin = []
        for r in range(4):
            k = n_el % 7; t = tmps[k]
            g = max(g_lo - 12 + ((g_hi - 30 - g_lo) * n_el) // tot, done[('w1', 0, b, qb)] + 4, tfree[k]); n_el += 1
            chain = [valu('v_mul_f32', t, h[r], h[r]), valu('v_fma_f32', t, t, sBETA, vALPHA), valu('v_mul_f32', t, t, h[r]),
                     valu('v_exp_f32', t, t), valu('v_fma_f32', t, t, sCQ, sCQ), valu('v_rcp_f32', t, t), valu('v_mul_f32', h[r], h[r], t)]
            for ins in chain: g = tl.place(g, ins, g + 5) + 1
            tfree[k] = g; fin.append(g)
        g = tl.place(max(fin[0], fin[1]), valu('v_cvt_pk_bf16_f32', h[0], h[0], h[1]), max(fin[0], fin[1]) + 4)
        g = tl.place(max(fin[2], fin[3], g + 1), valu('v_cvt_pk_bf16_f32', h[1], h[2], h[3]), max(fin[2], fin[3], g + 1) + 4)
        done[('gelu', b, qb)] = g
    for (b, qb) in els:
        h = Hacc(b, qb)
        g = max(done[('gelu', b, qb)] + 1, lastw + 1)
        if qb % 2 == 0: g = tl.place(g, valu('v_add_u32', vHW, sHS[b], vBF[qb // 2]), g + 3) + 1
        lastw = tl.place(g, ds_write('ds_write_b64', vHW, h[0:2], (qb % 2) * 1024, tok=[('H',)]), g + 6)
        assert lastw < gBq, (lastw, gBq)
    zc1 = starts[28]
    lastc = 0; sw = []
    for st_ in range(4):
        for qb in range(4):
            e, o_ = Qacc(2 * st_, qb), Qacc(2 * st_ + 1, qb)
            ch, b = st_ // 2, (2 * st_) % 4
            g = max(done[('wq', ch, b + 1, qb)] + 4, lastc)
            for d_, src, k in ((e[0], e, 0), (e[1], e, 2), (e[2], o_, 0), (e[3], o_, 2)):
                g = tl.place(g, tagr(valu('v_cvt_pk_bf16_f32', d_, src[k], src[k + 1]), src[k:k + 2], ('acc', 'wq')), zc1 - 4)
            lastc = g; sw.append((g + 1, e))
    g = 0
    for k, (lo, e) in enumerate(sw):
        dl = gX - 40 + 2 * k
        g = tl.place(max(lo, g), tagw(swap16(e[0], e[2]), 'Q'), max(dl, lo)); g = tl.place(g + 1, tagw(swap16(e[1], e[3]), 'Q'), max(dl + 1, g + 1))
    pack_store(tl, z, Zacc, 0, lambda b, qb: done[('w2', 0, b, qb)] + 4, 1, gX - 12)
    g = gBq + 2
    for ins in [valu('v_mov_b32', v(NEGM + k), 0) for k in range(16)] + attn_init():
        g = tl.place(g, ins, gX - 4)
    for ins in ones_init(): g = tl.place(g + 1, ins, gX - 2)
    zl = pack_store(tl, z, Zacc, 1, lambda b, qb: done[('w2', 1, b, qb)] + 4, 1, gX + 40)
    fill_xm1(tl, z, gX, N, items, zl + 1)
    tl1, z1 = tl, z
    if cfg.stamps:
        for nm_, g_ in [('ffn1_end', starts[8]), ('q_mid', starts[16]), ('q_end', starts[24]), ('f2a_end', starts[28]), ('f2b_end', gX)] + [(f'st{j}', starts[j]) for j in cfg.xst]:
            tl.gap[g_ - 1] += stamp(nm_)

    it0 = Timeline(); add_iter(it0, N, items, 0, first=True)
    lp = Timeline(); add_iter(lp, N, items, 1); add_iter(lp, N, items, 0)
    wot = []
    if cfg.pretouch:
        TS = cfg.tstride
        wot = [salu('s_mul_i32', sT0, sIDX, 16384 * cfg.gmap), salu('s_add_u32', sT0, sT0, sWOB), salu('s_mul_i32', sT1, sW, 64 * TS),
               salu('s_add_u32', sT0, sT0, sT1), salu('s_add_u32', sT1, sT0, 256 * TS)]
        g = it0.place(70, valu('v_mul_u32_u24', vOW1[0], TS // 16, vL16), 90)
        g = g1 = it0.place(cfg.bar_gap + 2, touch(vOW1[1], vOW1[0], SRD_WO, sT0), cfg.bar_gap + 20)
        if 16384 * cfg.gmap // (256 * TS) == 2: it0.place(g + 1, touch(vOW1[2], vOW1[0], SRD_WO, sT1), g + 12)
        wot = [(wot, 40, g1 - 1)]
    lp.busy_sh = set(); it0.busy_sh = set()
    te = Timeline(); ze = Sched(te)
    g29 = add_iter(te, N, items, 1, skip_own=('kd', 'ks'))
    g30 = add_iter(te, N, items, 0, skip_own=('kd', 'ks', 'vd', 'vs', 'kr'), skip_late=('kd', 'ks'))
    ostages = {}
    for k in range(16): ostages[k] = Stage('wo', k % 8, k // 8)
    lastv = max(g for g, kind, idx in items if kind == 'vd')
    ze.lastG = g29 + lastv + 1
    for j in range(3):
        for kk in range(2):
            if 4 * (j - 1) + 2 * kk - cfg.la < 0:
                sc, dd = stage_group(j, ostages[j], kk); ze.group(sc, dd, 0, step=3)
    assert ze.lastG < te.n() - 1, (ze.lastG, te.n())
    late = [item(kind, idx, 0) for g, kind, idx in sorted(items, key=lambda t: t[0]) if g >= N and kind in ('exp', 'add', 'cvt')]
    vr = [item('vr', (i, kh, e), 0) for i in range(8) for kh in range(2) for e in range(2)]
    mid = []
    for k, ins in enumerate(late):
        mid.append(ins)
        if k % 3 == 2 and len(vr) > 16: mid.append(vr.pop(0))
    ty = Timeline(); zy = Sched(ty)
    for y in y_order(): ty.add(y_mfma(y, 1, False))
    for ins in vr: zy.D(0, ins)
    ty.put(zy.lastD + 6, barrier(free=[('V', 1), ('V', 0), ('K', 0), ('K', 1)]))

    nz = []; A = nz.append; E = nz.extend
    E(stamp('attn_end'))
    rl = [v(NEGM + k) for k in range(4)]; tt = v(NEGM + 4)
    for qb in range(4):
        if qb in cfg.msum_qb: A(valu('v_mov_b32', rl[qb], v(LSUM + 4 * cfg.msum_qb.index(qb))))
        else:
            k = ADDQ.index(qb)
            A(valu('v_add_f32', rl[qb], v(LADD + 2 * k), v(LADD + 2 * k + 1)))
            A(valu('v_mov_b32', tt, rl[qb])); A(swap32(rl[qb], tt)); A(valu('v_add_f32', rl[qb], rl[qb], tt))
            A(valu('v_mov_b32', tt, rl[qb])); A(swap16(rl[qb], tt)); A(valu('v_add_f32', rl[qb], rl[qb], tt))
    A(salu('s_mov_b32', sT0, 2.0 ** -40)); A(salu('s_mov_b32', sT1, 2.0 ** 40)); A(salu('s_mov_b32', sT2, 1 if cfg.force_slow else 0))
    for qb in range(4):
        A(raw(f"v_cmp_nle_f32 vcc, {sT0}, {rl[qb]}", 'V', [sT0, rl[qb]], [VCC]))
        A(raw(f"s_or_b32 {sT2}, {sT2}, vcc_lo", 'S', [sT2, VCC], [sT2])); A(raw(f"s_or_b32 {sT2}, {sT2}, vcc_hi", 'S', [sT2, VCC], [sT2]))
        A(raw(f"v_cmp_nge_f32 vcc, {sT1}, {rl[qb]}", 'V', [sT1, rl[qb]], [VCC]))
        A(raw(f"s_or_b32 {sT2}, {sT2}, vcc_lo", 'S', [sT2, VCC], [sT2])); A(raw(f"s_or_b32 {sT2}, {sT2}, vcc_hi", 'S', [sT2, VCC], [sT2]))
    A(valu('v_mov_b32', tt, sT2)); A(salu('s_lshl_b32', sT0, sW, 2)); A(valu('v_mov_b32', v(NEGM + 5), sT0))
    A(ds_write('ds_write_b32', v(NEGM + 5), tt, 0, tok=[('flag',)]))
    A(barrier(need=[('flag',)]))
    A(valu('v_mov_b32', v(NEGM + 5), 0))
    A(ds_read('ds_read_b128', v(NEGM + 8, 4), v(NEGM + 5), 0, tok=[('flag',)]))
    for qb in range(4): A(valu('v_rcp_f32', rl[qb], rl[qb]))
    A(valu('v_or_b32', tt, v(NEGM + 8), v(NEGM + 9))); A(valu('v_or3_b32', tt, tt, v(NEGM + 10), v(NEGM + 11)))
    A(valu('v_readfirstlane_b32', sT2, tt))
    A(barrier(free=[('flag',)]))
    A(salu('s_andn2_b32', sT2, sT2, sSLOW))
    A(branch('s_cbranch_scc1', 'L_slow'))
    nz2 = []; A = nz2.append; E = nz2.extend
    A(salu('s_lshl_b32', sT0, sW, 14)); A(valu('v_add_u32', vHW, sT0, vL16))
    for g_ in range(4): E(stage_reads(0, ostages[0], g_))
    for sp in range(4):
        for qb in range(4):
            t8 = v(SB + 8 * ((4 * sp + qb) % 8), 8)
            for k in range(8): A(valu('v_accvgpr_read_b32', t8[k], O(2 * sp + k // 4, qb)[k % 4]))
            for k in range(8): A(valu('v_mul_f32', t8[k], t8[k], rl[qb]))
            for k in range(4): A(valu('v_cvt_pk_bf16_f32', t8[k], t8[2 * k], t8[2 * k + 1]))
            A(ds_write('ds_write_b128', vHW, t8[0:4], sp * 4096 + qb * 1024, tok=[('O',)]))
    A(barrier(need=[('O',)]))
    E(stamp('o_xchg'))
    def Bo(j, kk, qb): return a(128 + 32 * (j % 2) + 16 * kk + 4 * qb, 4)
    def oread(j, kk, qb): return tagw(ds_read('ds_read_b128', Bo(j, kk, qb), vL16, (2 * ostages[j].kp + kk) * 4096 + qb * 1024, tok=[('O',)]), ('B', j))
    for qb in range(4):
        for kk in range(2): A(oread(0, kk, qb))
    to = Timeline(); zo = Sched(to)
    starts = {}; blk_end = {}; done = {}
    for j in range(16):
        st = ostages[j]; starts[j] = to.n()
        for b in range(4):
            for qb in range(4):
                for kk in range(2):
                    d = Zacc(st.ch, b, qb)
                    m_ = mfma(d, Af(j % 2, b, kk), Bo(j, kk, qb), 0 if st.kp == 0 and kk == 0 else d)
                    tagr(m_, Af(j % 2, b, kk), ('A', st.kind, j)); tagr(m_, Bo(j, kk, qb), ('B', j)); tagw(m_, ('acc', 'wo'))
                    g = to.add(m_)
                done[(st.ch, b, qb)] = g
            blk_end[(j, b)] = to.n() - 1
    starts[16] = to.n()
    place_ring(to, zo, ostages, starts, blk_end, {j: [(oread(j + 1, kk, qb), 0) for qb in range(4) for kk in range(2)] for j in range(15)})
    pack_store(to, zo, Zacc, 0, lambda b, qb: done[(0, b, qb)] + 4, 0)
    if cfg.stamps: to.gap[starts[8] - 1] += stamp('o_mid')
    fin = []; A = fin.append
    for bp in range(2):
        A(salu('s_add_u32', sST[bp], sPB, (8 + bp * 4) * 1024))
        for qb in range(4):
            e, o_ = Zacc(1, 2 * bp, qb), Zacc(1, 2 * bp + 1, qb)
            A(valu('v_cvt_pk_bf16_f32', e[0], e[0], e[1])); A(valu('v_cvt_pk_bf16_f32', e[1], e[2], e[3]))
            A(valu('v_cvt_pk_bf16_f32', e[2], o_[0], o_[1])); A(valu('v_cvt_pk_bf16_f32', e[3], o_[2], o_[3]))
            A(bstore('buffer_store_dwordx4', e, vL16, SRD_WS, sST[bp], qb * 1024))
    if cfg.stamps:
        fin += stamp('end'); A(waitall()); fin += stamp('drained')
        A(salu('s_lshl_b32', sT0, s(2), 10)); A(salu('s_lshl_b32', sT1, sW, 8)); A(salu('s_add_u32', sT0, sT0, sT1))
        A(salu('s_add_u32', sT0, sT0, 1 << 26)); A(valu('v_lshrrev_b32', vHW, 2, vL16))
        A(bstore('buffer_store_dword', v(0), vHW, SRD_WS, sT0))
    A(label('L_end')); A(raw('s_endpgm', 'J'))

    sl = []; A = sl.append; E = sl.extend
    A(label('L_slow'))
    A(waitall())
    A(salu('s_mov_b32', sSLOW, -1)); A(salu('s_mov_b32', sIT, 0)); A(salu('s_mov_b32', sKO, sKV0))
    mx = [v(PB + k) for k in range(4)]
    for qb in range(4): A(valu('v_mov_b32', mx[qb], 0xff800000))
    for k in range(16): A(valu('v_mov_b32', v(NEGM + k), 0))
    sl_loop = []; A = sl_loop.append; E = sl_loop.extend
    A(label('L_max'))
    A(barrier(free=[('K', 0)]))
    sc, dd = kv_group('K', 0); E(sc); E(dd)
    A(barrier(need=[('K', 0)]))
    for kb in range(4):
        for st_ in range(4): A(item('kr', (kb, st_), 0))
    E(x_mfmas())
    for kb in range(4):
        for qb in range(4):
            A(valu('v_max3_f32', mx[qb], S(kb, qb)[0], S(kb, qb)[1], mx[qb])); A(valu('v_max3_f32', mx[qb], S(kb, qb)[2], S(kb, qb)[3], mx[qb]))
    A(salu('s_add_u32', sIT, sIT, 1)); A(scmp('s_cmp_lt_u32', sIT, 32)); A(branch('s_cbranch_scc1', 'L_max'))
    sl2 = []; A = sl2.append; E = sl2.extend
    tt = v(PB + 4)
    for qb in range(4):
        A(valu('v_mov_b32', tt, mx[qb])); A(swap32(mx[qb], tt)); A(valu('v_max_f32', mx[qb], mx[qb], tt))
        A(valu('v_mov_b32', tt, mx[qb])); A(swap16(mx[qb], tt)); A(valu('v_max_f32', mx[qb], mx[qb], tt))
        for r in range(4): A(valu('v_sub_f32', NM(qb)[r], 0, mx[qb]))
    E(attn_init())
    A(salu('s_mov_b32', sKO, sKV0)); A(salu('s_mov_b32', sVO, sKV0))
    A(barrier(free=[('K', 0)]))
    for which, slot in (('K', 0), ('K', 1), ('V', 0)):
        sc, dd = kv_group(which, slot); E(sc); E(dd)
    A(barrier(need=[('K', 0)]))
    for kb in range(4):
        for st_ in range(4): A(item('kr', (kb, st_), 0))
    ts = Timeline(); zs = Sched(ts)
    gs = add_xm1(ts, zs, N, items); fill_xm1(ts, zs, gs, N, items, 0)
    sl3 = [branch('s_branch', 'L_it0')]

    l_it0 = [label('L_it0')]
    pre_loop = [salu('s_mov_b32', sIT, 0)]
    l_loop = [label('L_loop')]
    cnt = [salu('s_add_u32', sIT, sIT, 1), scmp('s_cmp_lt_u32', sIT, 14)]
    back = [branch('s_cbranch_scc1', 'L_loop')]
    st_a = stamp('xm1_end'); st_b = stamp('loop_end')
    def paths():
        head = pro1 + pro2 + pre + tl1.emit() + st_a
        body = l_loop + lp.emit() + back
        att = l_it0 + it0.emit() + body + body + body + st_b + te.emit() + mid + ty.emit() + nz
        main = head + att + nz2 + to.emit() + fin
        slow = att[-400:] + sl + sl_loop + sl_loop + sl2 + ts.emit() + sl3 + att
        return [main, slow]
    for p in paths(): pass
    for _ in range(10):
        if not any([insert_waits(p) for p in paths()]): break
    for t_, z_ in ((tl1, z1), (te, ze), (to, zo), (ts, zs)):
        mark_busy(t_); place_flex(t_, z_.flex)
    mark_busy(it0); mark_busy(lp)
    place_flex(it0, [(pre_loop, 0, 30)] + wot)
    lastsc = max(g for g in range(lp.n()) if lp.sh[g])
    place_flex(lp, [(cnt, lastsc + 1, lp.n() - 1)])
    finalize(paths())
    check_tags(paths()[0])
    seq = pro1 + pro2 + pre + tl1.emit() + st_a + l_it0 + it0.emit() + l_loop + lp.emit() + back + st_b + te.emit() + mid + ty.emit() + nz + nz2 + to.emit() + fin \
        + sl + sl_loop + sl2 + ts.emit() + sl3
    if cfg.verbose:
        from collections import Counter
        for nm_, t_, cuts in (('tl1', tl1, [0, 224, 480, 736, 848, 960, 1024]), ('it0', it0, [0, N]), ('loop', lp, [0, 2 * N]), ('te', te, [0, N, 2 * N]), ('ty', ty, [0, ty.n()]), ('to', to, [0, 256, 512])):
            e = est_cycles(t_.emit())
            print(nm_, [(sum(c for c, _ in e[x:y]), 16 * (y - x)) for x, y in zip(cuts, cuts[1:])])
            print("    ", Counter(p_ for c, p_ in e if c > 16).most_common(14))
    info = dict(N=N, steady_ovf=ovf, tl1=(tl1.n(), tl1.overflow()), te=(te.n(), te.overflow()), to=(to.n(), to.overflow()),
                nops=sum(i.pre_nop for i in lp.emit()), waits=sum(bool(i.pre_wait) for i in lp.emit()),
                nops1=sum(i.pre_nop for i in tl1.emit()), nopso=sum(i.pre_nop for i in to.emit()))
    return seq, info

def build_k2():
    o = []; A = o.append; E = o.extend
    A(scmp('s_cmp_ge_u32', s(2), 512)); A(branch('s_cbranch_scc1', 'L2_end'))
    A(sload('s_load_dwordx2', s(4, 2), s(0, 2), 0)); A(sload('s_load_dwordx4', s(8, 4), s(0, 2), 72)); A(sload('s_load_dwordx2', s(6, 2), s(0, 2), 96))
    if cfg.stamps: A(raw("s_memrealtime s[36:37]", 'X', [], [s(36, 2)]))
    SX, SO_, SW_, SB_ = s(12, 4), s(16, 4), s(20, 4), s(24, 4)
    vu, vc, vt, vx, vb = v(1), v(2), v(3), v(4), v(5)
    A(valu('v_lshlrev_b32', vu, 4, v(0))); A(salu('s_lshl_b32', s(28), s(2), 12))
    A(valu('v_and_b32', vc, 15, v(0))); A(valu('v_bfe_u32', vt, v(0), 4, 2)); A(valu('v_lshrrev_b32', vx, 6, v(0)))
    A(valu('v_lshl_add_u32', vx, vx, 4, vc)); A(valu('v_lshlrev_b32', vx, 10, vx))
    A(valu('v_lshlrev_b32', vb, 3, vt)); A(valu('v_add_u32', vx, vx, vb))
    A(salu('s_lshr_b32', s(29), s(2), 4)); A(salu('s_lshl_b32', s(29), s(29), 16))
    A(salu('s_and_b32', s(30), s(2), 15)); A(salu('s_lshl_b32', s(30), s(30), 6)); A(salu('s_add_u32', s(29), s(29), s(30)))
    E(srd(SW_, s(6, 2), 1 << 28))
    for kind in (1, 0):
        for g in range(8):
            A(salu('s_add_u32', s(31 + (g % 2)), s(28), kind * (1 << 24) + g * (1 << 21)))
            A(bload('buffer_load_dwordx4', v(16 + 32 * kind + 4 * g, 4), vu, SW_, s(31 + (g % 2))))
        if kind == 1:
            E(srd(SB_, s(8, 2), 1024)); E(srd(SX, s(4, 2), 2048 * 512 * 2))
            A(bload('buffer_load_dwordx2', v(8, 2), vb, SB_, s(30))); A(bload('buffer_load_dwordx2', v(10, 2), vb, SB_, s(30), 32))
    A(bload('buffer_load_dwordx2', v(12, 2), vx, SX, s(29))); A(bload('buffer_load_dwordx2', v(14, 2), vx, SX, s(29), 32))
    E(srd(SO_, s(10, 2), 2048 * 512 * 2))
    A(salu('s_mov_b32', s(33), 0x00003f80)); A(salu('s_mov_b32', s(34), 0x3f800000)); A(salu('s_mov_b32', s(35), -math.log2(math.e)))
    zz = [v(80 + k) for k in range(8)]; yy = [v(88 + k) for k in range(8)]; xx = [v(96 + k) for k in range(8)]
    def unpack(dst, src):
        for k in range(4):
            A(valu('v_lshlrev_b32', dst[2 * k], 16, src[k])); A(valu('v_and_b32', dst[2 * k + 1], 0xffff0000, src[k]))
    def accum(dst, src):
        for k in range(4):
            A(valu('v_dot2_f32_bf16', dst[2 * k], src[k], s(33), dst[2 * k])); A(valu('v_dot2_f32_bf16', dst[2 * k + 1], src[k], s(34), dst[2 * k + 1]))
    unpack(zz, v(48, 4))
    for g in range(1, 8): accum(zz, v(48 + 4 * g, 4))
    accum(zz, v(8, 4))
    for k in range(8): A(valu('v_mul_f32', xx[k], s(35), zz[k]))
    for k in range(8): A(valu('v_exp_f32', xx[k], xx[k]))
    for k in range(8): A(valu('v_add_f32', xx[k], 1.0, xx[k]))
    for k in range(8): A(valu('v_rcp_f32', xx[k], xx[k]))
    for k in range(8): A(valu('v_mul_f32', zz[k], zz[k], xx[k]))
    unpack(yy, v(16, 4))
    for g in range(1, 8): accum(yy, v(16 + 4 * g, 4))
    unpack(xx, v(12, 4))
    for k in range(8): A(valu('v_fma_f32', xx[k], yy[k], zz[k], xx[k]))
    for k in range(4): A(valu('v_cvt_pk_bf16_f32', v(8 + k), xx[2 * k], xx[2 * k + 1]))
    A(bstore('buffer_store_dwordx2', v(8, 2), vx, SO_, s(29))); A(bstore('buffer_store_dwordx2', v(10, 2), vx, SO_, s(29), 32))
    if cfg.stamps:
        A(waitall()); A(raw("s_memrealtime s[38:39]", 'X', [], [s(38, 2)]))
        A(valu('v_mov_b32', v(20), s(36))); A(valu('v_mov_b32', v(21), s(38))); A(valu('v_mov_b32', v(22), 0))
        A(salu('s_lshl_b32', s(28), s(2), 3)); A(salu('s_add_u32', s(28), s(28), (1 << 26) + (1 << 20)))
        A(bstore('buffer_store_dwordx2', v(20, 2), v(22), SW_, s(28)))
    A(label('L2_end')); A(raw('s_endpgm', 'J'))
    finalize([o])
    return o

def kd(name, nv, acc, ns=102):
    return [".p2align 6", f".amdhsa_kernel {name}", f"  .amdhsa_next_free_vgpr {nv}", f"  .amdhsa_next_free_sgpr {ns}",
            f"  .amdhsa_accum_offset {acc}", "  .amdhsa_group_segment_fixed_size 0", "  .amdhsa_kernarg_size 104",
            "  .amdhsa_user_sgpr_count 2", "  .amdhsa_user_sgpr_kernarg_segment_ptr 1", "  .amdhsa_system_sgpr_workgroup_id_x 1",
            ".end_amdhsa_kernel"]

def generate():
    k1, info = build_k1(); k2 = build_k2()
    K1 = NAME + "_kernel"; K2 = "final_kernel"
    L = [f"; @launch kernel={K1} grid=(256,1,1) block=(256,1,1) lds=163840",
         f"; @launch kernel={K2} grid=(512,1,1) block=(256,1,1) lds=0",
         '.amdgcn_target "amdgcn-amd-amdhsa--gfx950"', ".text"]
    for nm, body in ((K1, k1), (K2, k2)):
        L += [f".globl {nm}", ".p2align 8", f".type {nm},@function", f"{nm}:"] + (["L_codebeg:"] if nm == K1 else []) + render(body)
        if nm == K1: L += ["L_codeend:"]
    L += ['.section .rodata,"a"'] + kd(K1, 512, 256) + kd(K2, 104, 104, 40)
    return "\n".join(L) + "\n", info

if __name__ == "__main__":
    out = sys.argv[1] if len(sys.argv) > 1 else "k.s"
    for kv in sys.argv[2:]:
        k, val = kv.split("="); setattr(cfg, k, eval(val))
    t, info = generate()
    open(out, "w").write(t)
    open(out + ".stamps", "w").write(" ".join(STAMPS))
    print(info, "lines", t.count("\n"), "stamps", STAMPS)
```

```python
import sys, math
from asmlib import *

NAME = "recurrent_scan__gqa_block_cached__dense_activation_gelu__prompt"
CQ = math.log2(math.e) / math.sqrt(128.0)
KG = math.sqrt(2.0 / math.pi)
ALPHA = -math.log2(math.e) * 2 * KG / CQ
BETA = ALPHA * 0.044715 / (CQ * CQ)

class Cfg:
    msum_qb = (1, 3)
    e0 = 37
    bar_gap = 104
    pat = 'D' * 8 + 'G.D' * 8 + 'G' + 'D' * 32
    force_slow = False
    stamps = False
    pretouch = True
    verbose = False
    gmap = 1
    codetouch = True
    tstride = 64
    la = 8
    dma0 = 8
    tplan = {1: 'qw'}
    tlate = {}
    k0at = (22, 1)
    pmods = 'sc1'
    spin = 1 << 20
    flag_lag = 16
    xst = ()
cfg = Cfg()

sW, sG, sQB = s(3), s(30), s(31)
SRD_X, SRD_K, SRD_V, SRD_WQ, SRD_W1, SRD_W2, SRD_WO, SRD_WS, SRD_B1 = (s(32 + 4 * i, 4) for i in range(9))
sT0, sT1, sT2, sT3 = s(68), s(69), s(70), s(71)
sSTG = s(72)
sSO = [s(73), s(74)]
sODD = s(75)
sHS = [s(76 + i) for i in range(4)]
sBETA, sCQ = s(80), s(81)
sPB = s(82)
sKO, sVO = s(83), s(84)
sKM0 = s(85)
sIT = s(86)
sSLOW = s(87)
sW2B, sWOB = s(88), s(89)
sST = [s(90), s(91)]
sLO, sHI = s(92), s(93)
sKV0 = s(94)
sIDX, sHF = s(95), s(86)
sTA, sTB = s(14), s(15)
SRD_DBG, SRD_OUT, SRD_B2 = SRD_W1, SRD_WQ, SRD_B1
sWN, sWT, sWS = s(4), s(5), s(6)
sMB, sFL, sCB, sXO, sQ4 = s(7), s(8), s(9), s(10), s(11)
sDONE, sNEW, sSPIN = s(12), s(13), s(16)
MBOX = 1 << 25
vTID = v(0); vL16 = v(1)
vTRA = [v(2 + i) for i in range(4)]
vOW1 = [v(6 + i) for i in range(4)]
vOWQ = [v(10 + i) for i in range(4)]
vKA = [v(14 + i) for i in range(4)]
vVA = [v(18 + i) for i in range(8)]
vOK, vOV = v(26), v(27)
vOL = [v(28 + i) for i in range(4)]
QB, SB, PB, NEGM = 32, 96, 160, 224
vL4, vZERO, vONE, vA0, vCNT, vF0, vXO, vP16 = (v(6 + i) for i in range(8))
vTRF = [v(240 + i) for i in range(4)]; vBF = [v(244), v(245)]
vHW = v(246); vXR = v(247)
vALPHA = v(248)
LSUM, ONES, LADD = 240, 248, 252
def Q(qb, st): return v(QB + 16 * qb + 4 * st, 4)
def S(kb, qb): return v(SB + 16 * kb + 4 * qb, 4)
def P(par, qb, kh): return v(PB + 32 * par + 8 * qb + 4 * kh, 4)
def O(i, qb): return a(16 * i + 4 * qb, 4)
def Kf(kb, st): return a(128 + 16 * kb + 4 * st, 4)
def Vf(i, kh): return a(192 + 8 * i + 4 * kh, 4)
def Af(par, b, kk): return a(192 + 32 * par + 8 * b + 4 * kk, 4)
def NM(qb): return v(NEGM + 4 * qb, 4)
L_V, L_K, L_STG = 0, 32768, 65536

def srd(dst, ptr, nbytes):
    return [salu('s_mov_b32', dst[0], ptr[0]), salu('s_mov_b32', dst[1], ptr[1]),
            salu('s_mov_b32', dst[2], nbytes), salu('s_mov_b32', dst[3], 0x20000)]

NSTAMP = [0]
def stamp(name, entry=False):
    if not cfg.stamps: return []
    n = NSTAMP[0]; NSTAMP[0] += 1
    STAMPS.append(name)
    rd = [raw("s_memtime s[96:97]", 'X', [], [s(96, 2)]), raw("s_memrealtime s[98:99]", 'X', [], [s(98, 2)])]
    wr = [raw(f"v_writelane_b32 v0, s96, {n}", 'V', [s(96), v(0)], [v(0)]),
          raw(f"v_writelane_b32 v0, s98, {32 + n}", 'V', [s(98), v(0)], [v(0)])]
    if entry: return rd, wr
    return rd + wr
STAMPS = []

class Stage:
    def __init__(st, kind, kp, ch, nkk=2):
        st.kind = kind; st.kp = kp; st.ch = ch; st.nkk = nkk

def stage_group(j, st, kk):
    slot = j % 3
    stride = {'w1': 3584, 'wq': 8192, 'w2': 1024, 'wo': 1024}[st.kind]
    srd_ = {'w1': SRD_W1, 'wq': SRD_WQ, 'w2': SRD_W2, 'wo': SRD_WO}[st.kind]
    vo = {'w1': vOW1, 'wq': vOWQ, 'w2': vOL, 'wo': vOL}[st.kind]
    so = sSO[kk]
    off = (64 * st.kp + 32 * kk) * stride + st.ch * 128
    if st.kind == 'w2': s1 = salu('s_add_u32', so, sW2B, off)
    elif st.kind == 'wo': s1 = salu('s_add_u32', so, sWOB, off)
    else: s1 = salu('s_mov_b32', so, off)
    s2 = salu('s_add_u32', M0, sSTG, slot * 8192 + kk * 4096)
    d = [dma(vo[u], srd_, so, u * 1024, tok=[('stg', slot, 2 * kk + u // 2)]) for u in range(4)]
    tagw(s1, (st.kind, j, kk)); tagw(s2, (st.kind, j, kk))
    for u in range(4):
        tagw(d[u], (st.kind, j, u % 2)); tagr(d[u], so, (st.kind, j, kk)); tagr(d[u], M0, (st.kind, j, kk))
    return [s1, s2], d

def stage_reads(j, st, gamma):
    slot = j % 3; kk, e = gamma // 2, gamma % 2
    ad = vTRF if st.kind == 'w1' else vTRA
    r = [ds_read('ds_read_b64_tr_b16', Af(j % 2, b, kk)[2 * e:2 * e + 2], ad[b], slot * 8192 + gamma * 2048, tok=[('stg', slot, gamma)])
         for b in range(4)]
    for i in r:
        tagw(i, ('A', st.kind, j)); i.ltag = (st.kind, j, 1)
        if st.kind == 'wo' and j < 3: i.ltag = None; i.lrd.append(('stgpre',))
    return r

def kv_group(which, slot):
    if which == 'K': so, vo, sr, base = sKO, vOK, SRD_K, L_K
    else: so, vo, sr, base = sVO, vOV, SRD_V, L_V
    sc = [salu('s_add_u32', so, so, 16384), salu('s_and_b32', so, so, 0x7ffff),
          salu('s_add_u32', M0, sKM0, base + slot * 16384)]
    d = [dma(vo, sr, so, u * 1024, tok=[(which, slot)]) for u in range(4)]
    tagw(sc[1], (which, slot)); tagw(sc[2], (which, slot))
    for i in d: tagr(i, so, (which, slot)); tagr(i, M0, (which, slot))
    return sc, d

class Sched:
    def __init__(z, tl):
        z.tl = tl; z.lastD = -1; z.lastG = -2; z.flex = []; tl.busy_sh = set()
    def D(z, lo, ins, dl=None):
        lo = max(lo, z.lastD + 1, 0)
        z.lastD = z.tl.place(lo, ins, deadline=None if dl is None else max(dl, lo)); return z.lastD
    def group(z, sc, dd, los, step=2, sclo=None):
        prev = z.lastG if sclo is None else sclo
        first = None
        for k, ins in enumerate(dd):
            lo = max(los[k] if isinstance(los, list) else los, z.lastG + (step if k or sclo is not None else max(step, 1 + len(sc))), 1)
            z.lastG = z.tl.place(lo, ins, deadline=lo + 5)
            if first is None: first = z.lastG
        if sc: z.flex.append((sc, prev + 1, first - 1))
        return z.lastG

def place_ring(tl, z, stages, starts, blk_end, extra, kvx={}):
    NS = len(stages)
    def base(j, gamma):
        while gamma >= 4 and j + 1 < NS: j += 1; gamma -= 4
        return starts[j] + (gamma * (starts[j + 1] - starts[j])) // 4 - 4
    for f in range(NS + 4):
        for kk in range(2):
            q0 = 4 * (f - 1) + 2 * kk - cfg.la
            if q0 < -1 + 0 or q0 // 4 >= NS: continue
            if q0 < 0: continue
            j, gq = q0 // 4, q0 % 4
            if f < NS and kk < stages[f].nkk:
                sc, dd = stage_group(f, stages[f], kk)
                los = []
                for gamma in (gq, gq + 1):
                    b0, b1 = base(j, gamma), base(j, gamma + 1)
                    los += [b0 + 3, b0 + 3 + (b1 - b0) // 2]
                z.group(sc, dd, [max(x, 2) for x in los])
            for which, slot, lo in kvx.get((j, gq // 2), []):
                if which in 'KV': sc, dd = kv_group(which, slot); z.group(sc, dd, lo)
                else: z.group([], slot, lo)
    for j in range(NS):
        r = j + 1; ex = extra.get(j, []); nex = len(ex)
        for gamma in range(4):
            rds = stage_reads(r, stages[r], gamma) if r < NS and gamma < 2 * stages[r].nkk else []
            lst = [(ins, blk_end.get((j - 1, b), 0)) for b, ins in enumerate(rds)]
            lst += [(i, max(lo, starts[j] - 1)) for i, lo in ex[(gamma * nex) // 4:((gamma + 1) * nex) // 4]]
            b1 = base(j, gamma + 1) if not (j == NS - 1 and gamma == 3) else starts[NS] - 4
            av = [g for g in range(max(base(j, gamma), 0), b1) if tl.used(g) == 0]
            for k, (ins, lo) in enumerate(lst):
                g = av[(k * len(av)) // len(lst)]
                if g < lo:
                    c = [x for x in av if x >= lo]
                    g = min(c, key=lambda x: (tl.used(x), x)) if c else lo
                tl.put(g, ins); z.lastD = max(z.lastD, g)

def place_flex(tl, flex):
    def wrap(g): return g % tl.n() if tl.cyclic else g
    for sc, lo, hi in flex:
        lo = max(lo, 0)
        assert hi >= lo, (sc, lo, hi)
        cand = [g for g in range(lo, hi + 1) if not any(i.cls == 'G' for i in tl.gap[wrap(g)])]
        assert cand, (sc, lo, hi)
        def load(g):
            k = len(tl.sh[wrap(g)]) + (wrap(g) in tl.busy_sh)
            return max(0, k + 1 + tl.used(wrap(g)) - 3) if k else 0
        pick = sorted(sorted(cand, key=lambda g: (load(g), -g))[:len(sc)])
        while len(pick) < len(sc): pick.append(pick[-1])
        for ins, g in zip(sc, pick): tl.put(g, ins)

def mark_busy(tl):
    tl.busy_sh = set()
    for g in range(tl.n()):
        nxt = tl.sh[g] + tl.gap[g] + ([tl.m[g + 1]] if g + 1 < tl.n() else [])
        if nxt and nxt[0].pre_wait: tl.busy_sh.add(g)

def touch(dst, voff, srd_, so, off=0): return bload('buffer_load_dword', dst, voff, srd_, so, off)

def k1_prologue(stages):
    o = []; A = o.append; E = o.extend
    A(scmp('s_cmp_ge_u32', s(2), 256)); A(branch('s_cbranch_scc1', 'L_end'))
    entry_wr = []
    if cfg.stamps:
        rd, entry_wr = stamp('entry', True); E(rd)
    A(sload('s_load_dwordx16', s(4, 16), s(0, 2), 0))
    A(sload('s_load_dwordx8', s(20, 8), s(0, 2), 64))
    A(sload('s_load_dwordx2', s(28, 2), s(0, 2), 96))
    vl, vc, vt, vx = v(232), v(233), v(234), v(235)
    t0, t1, t2, t3 = v(236), v(237), v(238), v(239)
    NSH = 32 // cfg.gmap
    A(valu('v_lshrrev_b32', t0, 6, vTID))
    A(valu('v_and_b32', vl, 63, vTID))
    A(valu('v_readfirstlane_b32', sW, t0))
    A(valu('v_and_b32', vc, 15, vl)); A(valu('v_lshrrev_b32', vt, 4, vl))
    A(valu('v_lshlrev_b32', vL16, 4, vl))
    if cfg.gmap == 1:
        A(salu('s_and_b32', sG, s(2), 7)); A(salu('s_lshr_b32', sQB, s(2), 3)); A(salu('s_mov_b32', sIDX, sQB)); A(salu('s_mov_b32', sHF, 0))
    else:
        A(salu('s_bfe_u32', sHF, s(2), 0x10003)); A(salu('s_and_b32', sG, s(2), 3)); A(salu('s_lshl_b32', sG, sG, 1)); A(salu('s_add_u32', sG, sG, sHF))
        A(salu('s_lshr_b32', sIDX, s(2), 4)); A(salu('s_and_b32', sT0, s(2), 4)); A(salu('s_lshl_b32', sT0, sT0, 2)); A(salu('s_add_u32', sQB, sIDX, sT0))
    xr, xt = v(230), v(231)
    A(valu('v_lshrrev_b32', xr, 2, vl)); A(valu('v_and_b32', xt, 3, vl))
    A(valu('v_lshlrev_b32', vx, 10, xr)); A(valu('v_lshl_add_u32', vx, xt, 4, vx))
    sXA, sXB = sST
    A(salu('s_lshl_b32', sT0, sQB, 16)); A(salu('s_lshl_b32', sT1, sW, 14)); A(salu('s_add_u32', sT0, sT0, sT1))
    A(salu('s_lshl_b32', sT1, sHF, 9)); A(salu('s_add_u32', sXA, sT0, sT1)); A(salu('s_xor_b32', sXB, sXA, 512))
    A(salu('s_and_b32', sODD, sW, 1))
    A(salu('s_lshr_b32', sT2, sW, 1)); A(salu('s_mul_i32', sT2, sT2, 7)); A(salu('s_mul_i32', sT3, sODD, 3)); A(salu('s_add_u32', sT2, sT2, sT3))
    for b in range(4):
        A(salu('s_add_u32', sT0, sODD, b)); A(salu('s_and_b32', sT0, sT0, 3)); A(salu('s_add_u32', sHS[b], sT0, sT2))
    A(valu('v_lshlrev_b32', t3, 3, vt))
    A(valu('v_lshrrev_b32', t1, 3, vTID)); A(valu('v_and_b32', t1, 512 // NSH - 1, t1)); A(valu('v_mul_u32_u24', t2, 3584, t1))
    A(valu('v_and_b32', t0, 7, vTID)); A(valu('v_lshl_add_u32', t2, t0, 6, t2))
    A(salu('s_mul_i32', sT2, sIDX, 512 // NSH * 3584)); A(salu('s_mul_i32', sT1, sG, 448)); A(salu('s_add_u32', sT2, sT2, sT1))
    if cfg.codetouch:
        A(salu('s_getpc_b64', s(100, 2)))
        A(salu('s_lshr_b32', sT0, s(2), 3)); A(salu('s_lshl_b32', sT0, sT0, 11)); A(salu('s_lshl_b32', sT3, sW, 9)); A(salu('s_add_u32', sT0, sT0, sT3))
        A(valu('v_and_b32', t0, 7, vl)); A(valu('v_lshlrev_b32', t0, 6, t0)); A(valu('v_add_u32', t0, sT0, t0))
        A(raw("v_min_u32 v236, L_codeend-L_codebeg-1024, v236", 'V', [t0], [t0]))
        A(I(f"global_load_dword a79, {t0}, s[100:101]", 'G', flat(t0, s(100, 2)), flat(a(79)), sub='load'))
    E(srd(SRD_X, s(4, 2), 2048 * 512 * 2)); E(srd(SRD_W1, s(16, 2), 512 * 1792 * 2))
    def xload(k): return bload('buffer_load_dwordx4', v(QB + 4 * k, 4), vx, SRD_X, sXA if k < 8 else sXB, (k % 8) * 64)
    if cfg.pretouch: A(touch(a(72), t2, SRD_W1, sT2))
    for k in range(8): A(xload(k))
    E(srd(SRD_B1, s(18, 2), 1792 * 2))
    for b in range(4):
        A(salu('s_lshl_b32', sT3, sHS[b], 5)); A(salu('s_add_u32', sT3, sT3, sT1))
        A(bload('buffer_load_dwordx2', a(64 + 2 * b, 2), t3, SRD_B1, sT3))
    rr, sc_, nat = v(228), v(229), v(225)
    A(valu('v_lshrrev_b32', rr, 3, vl))
    A(valu('v_and_b32', t0, 7, vl)); A(valu('v_lshlrev_b32', t1, 1, vt)); A(valu('v_xor_b32', sc_, t0, t1))
    A(valu('v_lshlrev_b32', sc_, 4, sc_))
    A(valu('v_xor_b32', t0, t1, vl)); A(valu('v_lshlrev_b32', vXR, 4, t0))
    A(valu('v_and_b32', t0, 4, rr)); A(valu('v_add_u32', nat, t0, rr))
    A(salu('s_lshr_b32', sT2, sW, 1)); A(salu('s_mul_i32', sT2, sT2, 224))
    A(salu('s_mul_i32', sT3, sODD, 96)); A(salu('s_add_u32', sT2, sT2, sT3)); A(salu('s_add_u32', sT1, sT1, sT2))
    A(valu('v_mul_u32_u24', t0, 3584, nat)); A(valu('v_add3_u32', t0, t0, sc_, sT1))
    rowoff = [0, 16, 4, 20]
    for u in range(4): A(valu('v_add_u32', vOW1[u], rowoff[u] * 3584 - u * 1024, t0))
    A(salu('s_mul_i32', sSTG, sW, 24576)); A(salu('s_add_u32', sSTG, sSTG, L_STG))
    E(srd(SRD_WQ, s(10, 2), 512 * 4096 * 2))
    lp, key = v(226), v(227)
    A(valu('v_lshlrev_b32', lp, 7, xr)); A(valu('v_lshl_add_u32', lp, xt, 3, lp)); A(valu('v_add_u32', lp, sSTG, lp))
    A(valu('v_and_b32', key, 3, rr))
    for b in range(4):
        A(valu('v_xor_b32', t0, b, key)); A(valu('v_lshl_add_u32', vTRA[b], t0, 5, lp))
        A(salu('s_add_u32', sT0, sODD, b)); A(salu('s_and_b32', sT0, sT0, 3))
        A(valu('v_xor_b32', t0, sT0, key)); A(valu('v_lshl_add_u32', vTRF[b], t0, 5, lp))
        A(salu('s_lshr_b32', sT1, sHS[b], 1)); A(salu('s_lshl_b32', sT1, sT1, 12))
        A(salu('s_and_b32', sT3, sHS[b], 1)); A(salu('s_lshl_b32', sT3, sT3, 3)); A(salu('s_add_u32', sHS[b], sT1, sT3))
    A(salu('s_lshl_b32', sT0, sODD, 11)); A(valu('v_add_u32', vBF[0], sT0, vXR))
    A(salu('s_xor_b32', sT0, sT0, 2048)); A(valu('v_add_u32', vBF[1], sT0, vXR))
    A(salu('s_lshl_b32', sT1, sG, 10)); A(salu('s_lshl_b32', sT2, sW, 8)); A(salu('s_add_u32', sT1, sT1, sT2))
    A(valu('v_lshlrev_b32', t0, 13, nat)); A(valu('v_add3_u32', t0, t0, sc_, sT1))
    for u in range(4): A(valu('v_add_u32', vOWQ[u], rowoff[u] * 8192 - u * 1024, t0))
    A(valu('v_lshlrev_b32', t0, 10, rr)); A(valu('v_add3_u32', t0, t0, sc_, sT2))
    for u in range(4): A(valu('v_add_u32', vOL[u], u * 7168, t0))
    A(salu('s_mul_i32', sW2B, sG, 224 * 1024)); A(salu('s_lshl_b32', sWOB, sG, 19))
    E(srd(SRD_K, s(6, 2), 8 * 2048 * 128 * 2)); E(srd(SRD_V, s(8, 2), 8 * 2048 * 128 * 2))
    E(srd(SRD_W2, s(20, 2), 1792 * 512 * 2)); E(srd(SRD_WO, s(12, 2), 4096 * 512 * 2))
    E(srd(SRD_WS, s(28, 2), 1 << 28))
    A(salu('s_lshl_b32', sKM0, sW, 12)); A(salu('s_add_u32', sT0, sWOB, sKM0))
    A(salu('s_lshl_b32', sT1, sW, 2)); A(valu('v_add_u32', t0, sT1, vt)); A(valu('v_xor_b32', t0, t0, vc))
    A(valu('v_lshlrev_b32', t1, 8, vt)); A(valu('v_lshl_add_u32', t0, t0, 4, t1)); A(valu('v_add_u32', vOK, sT0, t0))
    A(salu('s_lshl_b32', sT1, sODD, 2)); A(valu('v_add_u32', t0, sT1, vt)); A(valu('v_lshlrev_b32', t0, 1, t0)); A(valu('v_xor_b32', t0, t0, vc))
    A(valu('v_lshl_add_u32', t0, t0, 4, t1)); A(valu('v_add_u32', vOV, sT0, t0))
    A(valu('v_lshrrev_b32', t0, 2, vc)); A(valu('v_lshlrev_b32', t1, 12, t0))
    A(valu('v_lshl_add_u32', t1, xt, 8, t1)); A(valu('v_add_u32', t1, L_K, t1))
    A(valu('v_lshrrev_b32', t3, 1, vt)); A(valu('v_and_b32', key, 1, vt)); A(valu('v_lshl_add_u32', t3, key, 1, t3))
    A(valu('v_xor_b32', t3, t3, vc))
    for st_ in range(4):
        A(valu('v_xor_b32', lp, 4 * st_, t3)); A(valu('v_lshl_add_u32', vKA[st_], lp, 4, t1))
    A(valu('v_lshl_add_u32', t1, vt, 4, t0)); A(valu('v_lshlrev_b32', t1, 8, t1)); A(valu('v_lshl_add_u32', t1, xt, 3, t1))
    A(valu('v_lshl_add_u32', t3, key, 2, t0))
    for i in range(8):
        A(valu('v_xor_b32', lp, i, t3)); A(valu('v_lshl_add_u32', vVA[i], lp, 5, t1))
    wa, wb = vHW, v(255)
    A(valu('v_lshlrev_b32', t0, 1, xt)); A(valu('v_xor_b32', t0, t0, xr)); A(valu('v_lshl_add_u32', t0, xt, 4, t0)); A(valu('v_lshlrev_b32', t0, 4, t0))
    A(salu('s_lshl_b32', sT0, sW, 10)); A(salu('s_lshl_b32', sT1, sHF, 15)); A(salu('s_add_u32', sT0, sT0, sT1))
    A(valu('v_add_u32', wa, sT0, t0)); A(valu('v_xor_b32', wb, 32768, wa))
    A(salu('s_mov_b32', sBETA, BETA)); A(salu('s_mov_b32', sCQ, CQ))
    A(salu('s_lshl_b32', sPB, sG, 21)); A(salu('s_lshl_b32', sT0, sQB, 16)); A(salu('s_add_u32', sPB, sPB, sT0))
    A(salu('s_lshl_b32', sT0, sW, 14)); A(salu('s_add_u32', sPB, sPB, sT0))
    A(salu('s_mul_i32', sKV0, sIDX, 16384 * cfg.gmap)); A(salu('s_sub_u32', sKV0, sKV0, 16384))
    A(salu('s_mov_b32', sKO, sKV0)); A(salu('s_mov_b32', sVO, sKV0))
    A(salu('s_mov_b32', sSLOW, 0))
    A(salu('s_mov_b32', sLO, 0x00003f80)); A(salu('s_mov_b32', sHI, 0x3f800000))
    tq, tw, tk = v(249), v(250), v(251)
    TS = cfg.tstride
    per = 1024 // TS
    A(valu('v_lshrrev_b32', t0, int(math.log2(per)), vTID)); A(valu('v_lshlrev_b32', t0, 13, t0))
    A(valu('v_and_b32', t1, per - 1, vTID)); A(valu('v_mul_u32_u24', t1, TS, t1)); A(valu('v_add_u32', t0, t0, t1))
    A(salu('s_mul_i32', sT0, sIDX, 512 // NSH * 8192)); A(salu('s_lshl_b32', sT1, sG, 10)); A(salu('s_add_u32', sT0, sT0, sT1))
    A(valu('v_add_u32', tq, sT0, t0))
    A(valu('v_mul_u32_u24', t0, 28 * cfg.gmap, vTID)); A(salu('s_mul_i32', sT0, sIDX, 7168 * cfg.gmap)); A(salu('s_add_u32', sT0, sT0, sW2B))
    A(valu('v_add_u32', tw, sT0, t0))
    A(valu('v_mul_u32_u24', t0, TS, vTID)); A(salu('s_mul_i32', sT0, sIDX, 16384 * cfg.gmap)); A(salu('s_add_u32', sT0, sT0, sWOB))
    A(valu('v_add_u32', tk, sT0, t0))
    nrep = (16384 * cfg.gmap) // (256 * TS)
    tch = {'q': [], 'w': [], 'k': [], 'v': []}
    A(salu('s_mov_b32', sTA, (256 // per) * 8192)); A(salu('s_mov_b32', sTB, 256 * TS))
    assert nrep in (1, 2) or (nrep == 0)
    for r_ in range(max(nrep, 1)):
        tch['q'].append(touch(a(73), tq, SRD_WQ, sTA if r_ else 0))
        tch['k'].append(touch(a(75), tk, SRD_K, sTB if r_ else 0)); tch['v'].append(touch(a(76), tk, SRD_V, sTB if r_ else 0))
    tch['w'].append(touch(a(74), tw, SRD_W2, 0))
    E(entry_wr); E(stamp('setup'))
    for k in range(8, 16): A(xload(k))
    groups = []
    for j in range(3):
        for kk in range(2):
            if 4 * (j - 1) + 2 * kk - cfg.la < 0:
                sc, dd = stage_group(j, stages[j], kk); groups.append(sc + dd[:1]); groups += [[d] for d in dd[1:]]
        if cfg.pretouch:
            for ch_ in cfg.tplan.get(j, ''): groups += [[x_] for x_ in tch[ch_]]
    nm = v(232); D0 = SB
    A(valu('v_lshlrev_b32', nm, 16, v(QB))); A(valu('v_xor_b32', nm, 0x80000000, nm)); A(dpp('v_mov_b32', nm, nm, None, [0, 0, 0, 0]))
    s1 = [v(224, 2), v(226, 2)]; s2 = [v(228, 2), v(230, 2)]
    for st_ in range(16):
        for k in range(4 * st_, 4 * st_ + 4):
            A(valu('v_dot2_f32_bf16', v(D0 + 2 * k), v(QB + k), sLO, nm))
            A(valu('v_dot2_f32_bf16', v(D0 + 2 * k + 1), v(QB + k), sHI, nm))
        for k in range(4 * st_, 4 * st_ + 4):
            d = v(D0 + 2 * k, 2)
            if k < 2: A(valu('v_pk_mul_f32', s2[k], d, d))
            else: A(valu('v_pk_fma_f32', s2[k % 2], d, d, s2[k % 2]))
        for k in range(4 * st_, 4 * st_ + 4):
            d = v(D0 + 2 * k, 2)
            if k in (2, 3): A(valu('v_pk_add_f32', s1[k % 2], d, v(D0 + 2 * (k - 2), 2)))
            elif k > 3: A(valu('v_pk_add_f32', s1[k % 2], d, s1[k % 2]))
        if st_ >= cfg.dma0 and groups: E(groups.pop(0))
    E(stamp('x_in'))
    A(valu('v_pk_add_f32', s1[0], s1[0], s1[1])); A(valu('v_pk_add_f32', s2[0], s2[0], s2[1]))
    a1, a2 = v(224), v(228)
    A(valu('v_add_f32', a1, v(224), v(225))); A(valu('v_add_f32', a2, v(228), v(229)))
    for perm in ([1, 0, 3, 2], [2, 3, 0, 1]):
        A(dpp('v_add_f32', a1, a1, a1, perm)); A(dpp('v_add_f32', a2, a2, a2, perm))
    A(valu('v_mul_f32', a1, 1.0 / 512, a1))
    A(valu('v_mov_b32', v(226), 1e-5)); A(valu('v_fmac_f32', v(226), 1.0 / 512, a2))
    A(raw("v_fma_f32 v226, -v224, v224, v226", 'V', [v(224), v(226)], [v(226)]))
    A(valu('v_max_f32', v(226), 1e-5, v(226)))
    A(valu('v_rsq_f32', v(226), v(226))); A(valu('v_mul_f32', v(226), sCQ, v(226))); A(valu('v_mov_b32', v(227), v(226)))
    A(raw("v_mul_f32 v228, -v224, v226", 'V', [v(224), v(226)], [v(228)])); A(valu('v_mov_b32', v(229), v(228)))
    for st_ in range(16):
        for k in range(4 * st_, 4 * st_ + 4):
            A(valu('v_pk_fma_f32', v(D0 + 2 * k, 2), v(D0 + 2 * k, 2), v(226, 2), v(228, 2)))
        for k in range(4 * st_, 4 * st_ + 4):
            A(valu('v_cvt_pk_bf16_f32', v(QB + k), v(D0 + 2 * k), v(D0 + 2 * k + 1)))
        A(ds_write('ds_write_b128', wa if st_ < 8 else wb, v(QB + 4 * st_, 4), (st_ % 8) * 4096, tok=[('xq',)]))
        if groups: E(groups.pop(0))
    tmp = [v(D0 + k) for k in range(8)]
    for k in range(8): A(valu('v_accvgpr_read_b32', tmp[k], a(64 + k)))
    for k in range(8):
        A(valu('v_lshlrev_b32', v(NEGM + 2 * k), 16, tmp[k])); A(valu('v_and_b32', v(NEGM + 2 * k + 1), 0xffff0000, tmp[k]))
    for k in range(8): A(valu('v_pk_mul_f32', v(NEGM + 2 * k, 2), v(NEGM + 2 * k, 2), s(80, 2), mods="op_sel:[0,1] op_sel_hi:[1,1]"))
    A(valu('v_mov_b32', vALPHA, ALPHA))
    A(barrier(need=[('xq',)]))
    for g_ in range(4): E(stage_reads(0, stages[0], g_))
    for gr in groups: E(gr)
    E(stamp('ln_done'))
    return o, tch

def Bx(kp, kk, qb): return a(32 * (kp % 2) + 16 * kk + 4 * qb, 4)
def Hf(st_, qb): return a({0: 0, 1: 16, 2: 64, 3: 80, 4: 96, 5: 112, 6: 32}[st_] + 4 * qb, 4)
def Hacc(b, qb): return v(SB + 16 * b + 4 * qb, 4)
def Qacc(i, qb): return Q(qb, i // 2) if i % 2 == 0 else v(PB + 16 * qb + 4 * (i // 2), 4)
def Zacc(ch, b, qb):
    if ch == 0: return v(SB + 32 * (b % 2) + 16 * (b // 2) + 4 * qb, 4)
    return v(PB + 32 * (1 - b % 2) + 16 * (b // 2) + 4 * qb, 4)

def pack_store(tl, z, acc, ch, ready, kind, dl=None):
    last = 0
    for bp in range(2):
        so = sST[bp]
        sc = tagw(salu('s_add_u32', so, sPB, kind * (1 << 24) + (ch * 8 + bp * 4) * 1024), (kind, ch, bp))
        first = None
        for qb in range(4):
            e, o_ = acc(ch, 2 * bp, qb), acc(ch, 2 * bp + 1, qb)
            g = max(ready(2 * bp, qb), last)
            tg = ('acc', 'w2' if kind else 'wo')
            def cv(d, src, k): return tagw(tagr(valu('v_cvt_pk_bf16_f32', d, src[k], src[k + 1]), src[k:k + 2], tg), 'pk')
            g = tl.place(g, cv(e[0], e, 0), dl)
            g = tl.place(g, cv(e[1], e, 2), dl)
            g = max(g, ready(2 * bp + 1, qb))
            g = tl.place(g, cv(e[2], o_, 0), dl)
            last = g = tl.place(g, cv(e[3], o_, 2), dl)
            g = tl.place(g + 1, tagr(tagr(bstore('buffer_store_dwordx4', e, vL16, SRD_WS, so, qb * 1024, mods=cfg.pmods, tok=[('P', kind, ch, bp, qb)]), e, 'pk'), so, (kind, ch, bp)), None if dl is None else dl + 8)
            if first is None: first = g
            z.last_store = g
        z.flex.append(([sc], max(first - 6, 0), first - 1))
    return last

def y_order():
    ms = [('m', qb, kh) for qb in cfg.msum_qb for kh in range(2)]
    pv = [('p', i, qb, kh) for i in range(8) for qb in range(4) for kh in range(2)]
    return ms + pv
def x_mfmas(par=None):
    o = []
    for kb in range(4):
        for qb in range(4):
            for st_ in range(4):
                m_ = mfma(S(kb, qb), Kf(kb, st_), Q(qb, st_), NM(qb) if st_ == 0 else S(kb, qb))
                if par is not None:
                    tagr(m_, Kf(kb, st_), ('Kf', 1 - par)); tagr(m_, Q(qb, st_), 'Q'); tagw(m_, ('S', par, st_))
                    if st_: tagr(m_, S(kb, qb), ('S', par, st_ - 1))
                o.append(m_)
    return o
def y_mfma(y, par, first):
    if y[0] == 'm':
        _, qb, kh = y; acc = v(LSUM + 4 * cfg.msum_qb.index(qb), 4)
        return mfma(acc, v(ONES, 4), P(par, qb, kh), 0 if first and kh == 0 else acc)
    _, i, qb, kh = y
    return tagr(tagr(mfma(O(i, qb), Vf(i, kh), P(par, qb, kh), 0 if first and kh == 0 else O(i, qb)), Vf(i, kh), ('Vf', par)), P(par, qb, kh), 'P')
ADDQ = None
def item(kind, idx, par):
    if kind == 'bar': return barrier(need=[('K', par), ('V', 1 - par)], free=[('K', 1 - par), ('V', par)])
    if kind == 'exp':
        kb, qb, r = idx; return tagw(tagr(valu('v_exp_f32', S(kb, qb)[r], S(kb, qb)[r]), S(kb, qb)[r], ('S', par, 3)), ('E', par))
    if kind == 'add':
        kb, qb, r = idx; l = v(LADD + 2 * ADDQ.index(qb) + r % 2); return tagr(valu('v_add_f32', l, S(kb, qb)[r], l), S(kb, qb)[r], ('E', par))
    if kind == 'cvt':
        kb, qb, h = idx
        return tagw(tagr(valu('v_cvt_pk_bf16_f32', P(1 - par, qb, kb // 2)[2 * (kb % 2) + h], S(kb, qb)[2 * h], S(kb, qb)[2 * h + 1]), S(kb, qb)[2 * h:2 * h + 2], ('E', par)), 'P')
    if kind == 'kr':
        kb, st_ = idx; return tagw(ds_read('ds_read_b128', Kf(kb, st_), vKA[st_], par * 16384 + kb * 1024, tok=[('K', par)]), ('Kf', par))
    if kind == 'vr':
        i, kh, e = idx
        return tagw(ds_read('ds_read_b64_tr_b16', Vf(i, kh)[2 * e:2 * e + 2], vVA[i], (1 - par) * 16384 + (8 * kh + 4 * e) * 256, tok=[('V', 1 - par)]), ('Vf', 1 - par))
    if kind == 'kd': return kv_group('K', 1 - par)[1][idx]
    if kind == 'vd': return kv_group('V', par)[1][idx]
    if kind == 'ks': return kv_group('K', 1 - par)[0][idx]
    if kind == 'vs': return kv_group('V', par)[0][idx]
    if kind == 'wd': return dma(vOL[0], SRD_WO, sWS, 0, tok=[('stgpre',)])
    if kind == 'ws':
        return [salu('s_and_b32', sT0, sWN, 1), salu('s_lshl_b32', sT0, sT0, 7), salu('s_lshr_b32', sT1, sWN, 1), salu('s_lshl_b32', sT1, sT1, 13),
                salu('s_add_u32', sT0, sT0, sT1), salu('s_add_u32', sT0, sT0, sWT),
                salu('s_sub_u32', sT1, sWN, 4), salu('s_max_i32', sT1, sT1, 0), salu('s_lshl_b32', sT2, sT1, 13),
                scmp('s_cmp_lt_u32', sWN, 4), salu('s_cselect_b32', sT0, sT0, sT2), salu('s_add_u32', sWS, sT0, sWOB),
                salu('s_lshl_b32', sT1, sT1, 10), salu('s_add_u32', sWN, sWN, 1)][idx]
    if kind == 'wm': return salu('s_add_u32', M0, sSTG, sT1)
    raise KeyError(kind)

def steady_schedule(busy=()):
    global ADDQ
    ADDQ = [q for q in range(4) if q not in cfg.msum_qb]
    tl = Timeline(cyclic=True)
    for m in x_mfmas(): tl.add(m)
    for y in y_order(): tl.add(y_mfma(y, 0, False))
    N = tl.n(); items = []
    def pl(g, kind, idx, dl=None):
        g = tl.place(g, item(kind, idx, 0), dl); items.append((g, kind, idx)); return g
    ex = [(kb, qb, r) for kb in range(4) for qb in range(4) for r in range(4)]
    eg = {}
    for k, e in enumerate(ex): eg[e] = pl(cfg.e0 + (k * N) // 64, 'exp', e)
    B = pl(cfg.bar_gap, 'bar', 0)
    nm_ = 2 * len(cfg.msum_qb)
    rd = [('kr', (kb, st_)) for kb in range(4) for st_ in range(4)] + [('vr', (i, kh, e)) for i in range(8) for kh in range(2) for e in range(2)]
    dm = [('kd', u) for u in range(4)] + [('vd', u) for u in range(4)] + [('wd', 0)]
    free = [g for g in range(B + 1, B + N) if tl.used(g % N) == 0]
    nfree = len(free) - 56
    pat = cfg.pat
    assert pat.count('D') == 48 and pat.count('G') == 9 and len(pat) <= len(free), (pat.count('D'), pat.count('G'), len(pat), len(free))
    gk = []; gv = []
    for g, ch in zip(free, pat):
        if ch == 'D':
            kind, idx = rd.pop(0); pl(g, kind, idx); last = g
            if kind == 'kr': assert g <= N + 16 * idx[0] - 5, (idx, g)
            else: assert 64 + nm_ + 8 * idx[0] + 8 <= g <= N + 64 + 8 * idx[0], (idx, g)
        elif ch == 'G':
            kind, idx = dm.pop(0); pl(g, kind, idx); (gk if kind == 'kd' else gv).append(g)
            if kind == 'wd': assert g >= N
    assert last < B + N - 3, last
    vs = []
    for (kb, qb, r) in ex:
        if r % 2: vs.append((eg[(kb, qb, r)] + 1, 'cvt', (kb, qb, r // 2)))
        if qb in ADDQ: vs.append((eg[(kb, qb, r)] + 1, 'add', (kb, qb, r)))
    cap = [2 - tl.used(g) for g in range(N)]
    assert sum(cap) >= len(vs), (sum(cap), len(vs))
    fifo = []; asg = {}
    allv = sorted([(g0 + p_ * N, p_, k) for p_ in range(5) for k, (g0, _, _) in enumerate(vs)])
    ptr = 0
    for t in range(7 * N):
        while ptr < len(allv) and allv[ptr][0] <= t: fifo.append(allv[ptr]); ptr += 1
        for _ in range(cap[t % N]):
            if fifo:
                _, p_, k = fifo.pop(0); asg[(p_, k)] = t - p_ * N
    for k, (g0, kind, idx) in enumerate(vs):
        g = asg[(3, k)]; assert g == asg[(2, k)]
        tl.put(g, item(kind, idx, 0)); items.append((g, kind, idx))
        assert g < N + 16 * idx[0] + 4 * idx[1] - 1 and g < N + 62, (kind, idx, g)
    tl.busy_sh = set(busy)
    def plsc(kind, n, lo, hi):
        ins = [item(kind, k, 0) for k in range(n)]
        place_flex(tl, [(ins, lo, hi)])
        for k, i in enumerate(ins): items.append((i.at, kind, k))
    plsc('ks', 3, gk[0] - 12, gk[0] - 1)
    plsc('vs', 3, gk[3] + 1, gv[0] - 1)
    plsc('wm', 1, gv[3] + 1, gv[4] - 1)
    gm = items[-1][0]
    plsc('ws', 14, gv[0] + 1, gm - 1)
    assert gv[0] + 1 >= N
    return N, items, tl.overflow()

def add_iter(tl, N, items, par, first=False, skip_own=(), skip_late=()):
    g0 = tl.n()
    for m in x_mfmas(par): tl.add(m)
    for y in y_order(): tl.add(y_mfma(y, par, first))
    for g, kind, idx in items:
        if g >= N and kind not in skip_late: tl.put(g0 + g - N, item(kind, idx, 1 - par))
    for g, kind, idx in items:
        if g < N and kind not in skip_own: tl.put(g0 + g, item(kind, idx, par))
    return g0

def attn_init():
    o = [valu('v_mov_b32', v(LADD + k), 0) for k in range(4)]
    return o
def ones_init():
    t = v(ONES)
    return [valu('v_and_b32', t, 0x30, vL16), raw(f"v_cmp_eq_u32 vcc, 0, {t}", 'V', [t], [VCC]),
            valu('v_mov_b32', v(ONES + 1), 0x3f803f80), valu('v_cndmask_b32', t, 0, v(ONES + 1))] + \
           [valu('v_mov_b32', v(ONES + k), t) for k in range(1, 4)]

def add_xm1(tl, z, N, items, vlo=0):
    g0 = tl.n()
    for m in x_mfmas(1): tl.add(m)
    return g0
def fill_xm1(tl, z, g0, N, items, cvt_lo):
    B = [g for g, k, i in items if k == 'bar'][0]
    sh = g0 + 64 - N
    own = sorted([it for it in items if it[0] < N], key=lambda t: t[0])
    end = g0 + 63
    gb = tl.place(B + sh, item('bar', 0, 1), B + sh + 2)
    lastG = gb; pend = {'ks': [], 'vs': []}
    for g, kind, idx in own:
        if kind in ('kd', 'vd'):
            lo = max(g + sh, lastG + (4 if idx == 0 else 2))
            gg = tl.place(lo, item(kind, idx, 1), min(lo + 3, end))
            if idx == 0:
                k2 = kind[0] + 's'
                z.flex.append(([item(k2, k, 1) for k in range(3)], max(lastG, z.lastG) + 1, gg - 1))
            lastG = gg
    for k2 in ('ks', 'vs'):
        early = [idx for g, kind, idx in own if kind == k2]
        if early and not any(kind == k2[0] + 'd' and idx == 0 for g, kind, idx in own):
            z.flex.append(([item(k2, k, 1) for k in sorted(early)], lastG + 1, end))
        elif any(kind == k2[0] + 'd' and idx == 0 for g, kind, idx in own): assert len(early) == 3
    z.lastD = max(z.lastD, gb)
    for g, kind, idx in own:
        if kind == 'kr':
            z.D(max(g + sh, g0 + 16 * idx[0] + 16), item(kind, idx, 1), end)
        assert kind != 'vr'
    eg = {}; last = g0
    for g, kind, idx in own:
        if kind == 'exp':
            lo = max(g0 + 16 * idx[0] + 4 * idx[1] + 7, last)
            last = eg[idx] = tl.place(min(lo, end - 1), item(kind, idx, 1), end - 1)
    for g, kind, idx in own:
        if kind == 'add': tl.place(eg[idx] + 1, item(kind, idx, 1), end)
        if kind == 'cvt': tl.place(max(eg[(idx[0], idx[1], 2 * idx[2] + 1)] + 1, cvt_lo), item(kind, idx, 1), end)

def build_k1():
    stages = {}
    j = 0
    for kp in range(8): stages[j] = Stage('w1', kp, 0); j += 1
    for kp in range(8):
        for ch in range(2): stages[j] = Stage('wq', kp, ch); j += 1
    for ch in range(2):
        for kp in range(4): stages[j] = Stage('w2', kp, ch, 2 if kp < 3 else 1); j += 1
    NS1 = j
    pro1, tch = k1_prologue(stages); pro2 = []

    N, items, ovf = steady_schedule()
    tl = Timeline(); z = Sched(tl)
    starts = {}; blk_end = {}; done = {}
    for j in range(NS1):
        st = stages[j]; starts[j] = tl.n()
        for b in range(4):
            for qb in range(4):
                if st.kind == 'w1' and b == 3 and qb >= 2: continue
                for kk in range(st.nkk):
                    first = st.kp == 0 and kk == 0
                    if st.kind == 'w1': d = Hacc(b, qb); B_ = Bx(st.kp, kk, qb); c = NM(b) if first else d
                    elif st.kind == 'wq': d = Qacc(4 * st.ch + b, qb); B_ = Bx(st.kp, kk, qb); c = 0 if first else d
                    else: d = Zacc(st.ch, b, qb); B_ = Hf(2 * st.kp + kk, qb); c = 0 if first else d
                    m_ = mfma(d, Af(j % 2, b, kk), B_, c)
                    tagr(m_, Af(j % 2, b, kk), ('A', st.kind, j)); tagr(m_, B_, ('B', st.kind, 2 * st.kp + kk))
                    tagw(m_, ('acc', st.kind))
                    if not first: tagr(m_, d, ('acc', st.kind))
                    g = tl.add(m_)
                done[(st.kind, st.ch, b, qb)] = g
            blk_end[(j, b)] = tl.n() - 1
    starts[NS1] = tl.n()
    gX = add_xm1(tl, z, N, items)
    gBm = starts[8 + 8] + 6
    gBq = starts[8 + 14] + 8
    gB2 = starts[NS1] - 56
    tl.put(gBm, barrier(free=[('xq',)]))
    tl.put(gBq, barrier(need=[('H',)], free=[('xq',)]))
    tl.put(gB2, barrier(need=[('K', 0)], free=[('H',)]))
    pre = []
    def bread(kind, kp, kk, qb):
        st_ = 2 * kp + kk
        if kind == 'w1': return tagw(ds_read('ds_read_b128', Bx(kp, kk, qb), vBF[qb // 2], st_ * 4096 + (qb % 2) * 1024, tok=[('xq',)]), ('B', kind, st_))
        return tagw(ds_read('ds_read_b128', Bx(kp, kk, qb), vXR, st_ * 4096 + qb * 1024, tok=[('xq',)]), ('B', kind, st_))
    for qb in range(4):
        for kk in range(2): pre.append(bread('w1', 0, kk, qb))
    extra = {j: [] for j in range(NS1)}
    for j in range(7): extra[j] = [(bread('w1', j + 1, kk, qb), 0) for qb in range(4) for kk in range(2)]
    extra[7] = [(bread('wq', 0, kk, qb), 0) for qb in range(4) for kk in range(2)]
    for kp in range(7):
        rs = [(bread('wq', kp + 1, kk, qb), 0) for qb in range(4) for kk in range(2)]
        extra[8 + 2 * kp] = rs[:4]; extra[9 + 2 * kp] = rs[4:]
    def hread(st_, qb): return tagw(ds_read('ds_read_b128', Hf(st_, qb), vXR, st_ * 4096 + qb * 1024, tok=[('H',)]), ('B', 'w2', st_))
    hr = [(hread(2 * kp + kk, qb), gBq + 1) for kp in range(3) for qb in range(4) for kk in range(2)] + [(hread(6, qb), starts[24]) for qb in range(4)]
    extra[22] = hr[:3]; extra[23] = hr[3:8]; extra[24] = hr[8:16]; extra[25] = hr[16:24]; extra[26] = hr[24:28]
    kr0 = [(item('kr', (kb, st_), 0), gB2 + 1) for kb in range(4) for st_ in range(4)]
    extra[30] = kr0[:6]; extra[31] = kr0[6:12]
    kvx = {cfg.k0at: [('K', 0, gBq + 1)], (29, 1): [('K', 1, gB2 + 1), ('V', 0, gB2 + 1)]}
    if cfg.pretouch:
        for j_, t_ in cfg.tlate.items(): kvx.setdefault((j_, 0), []).extend(('t', tch[c_], 0) for c_ in t_)
    place_ring(tl, z, stages, starts, blk_end, extra, kvx)
    for ins, lo in kr0[12:]: z.D(gX, ins, gX + 20)
    tmps = [v(249 + k) for k in range(7)]
    tfree = [0] * 7; n_el = 0
    g_lo = starts[8]; g_hi = gBq - 8
    els = [(b, qb) for b in range(4) for qb in range(4) if not (b == 3 and qb >= 2)]
    tot = len(els) * 4
    lastw = gBm
    for (b, qb) in els:
        h = Hacc(b, qb); fin = []
        for r in range(4):
            k = n_el % 7; t = tmps[k]
            g = max(g_lo - 12 + ((g_hi - 30 - g_lo) * n_el) // tot, done[('w1', 0, b, qb)] + 4, tfree[k]); n_el += 1
            chain = [valu('v_mul_f32', t, h[r], h[r]), valu('v_fma_f32', t, t, sBETA, vALPHA), valu('v_mul_f32', t, t, h[r]),
                     valu('v_exp_f32', t, t), valu('v_fma_f32', t, t, sCQ, sCQ), valu('v_rcp_f32', t, t), valu('v_mul_f32', h[r], h[r], t)]
            for ins in chain: g = tl.place(g, ins, g + 5) + 1
            tfree[k] = g; fin.append(g)
        g = tl.place(max(fin[0], fin[1]), valu('v_cvt_pk_bf16_f32', h[0], h[0], h[1]), max(fin[0], fin[1]) + 4)
        g = tl.place(max(fin[2], fin[3], g + 1), valu('v_cvt_pk_bf16_f32', h[1], h[2], h[3]), max(fin[2], fin[3], g + 1) + 4)
        done[('gelu', b, qb)] = g
    for (b, qb) in els:
        h = Hacc(b, qb)
        g = max(done[('gelu', b, qb)] + 1, lastw + 1)
        if qb % 2 == 0: g = tl.place(g, valu('v_add_u32', vHW, sHS[b], vBF[qb // 2]), g + 3) + 1
        lastw = tl.place(g, ds_write('ds_write_b64', vHW, h[0:2], (qb % 2) * 1024, tok=[('H',)]), g + 6)
        assert lastw < gBq, (lastw, gBq)
    zc1 = starts[28]
    lastc = 0; sw = []
    for st_ in range(4):
        for qb in range(4):
            e, o_ = Qacc(2 * st_, qb), Qacc(2 * st_ + 1, qb)
            ch, b = st_ // 2, (2 * st_) % 4
            g = max(done[('wq', ch, b + 1, qb)] + 4, lastc)
            for d_, src, k in ((e[0], e, 0), (e[1], e, 2), (e[2], o_, 0), (e[3], o_, 2)):
                g = tl.place(g, tagr(valu('v_cvt_pk_bf16_f32', d_, src[k], src[k + 1]), src[k:k + 2], ('acc', 'wq')), zc1 - 4)
            lastc = g; sw.append((g + 1, e))
    g = 0
    for k, (lo, e) in enumerate(sw):
        dl = gX - 40 + 2 * k
        g = tl.place(max(lo, g), tagw(swap16(e[0], e[2]), 'Q'), max(dl, lo)); g = tl.place(g + 1, tagw(swap16(e[1], e[3]), 'Q'), max(dl + 1, g + 1))
    pack_store(tl, z, Zacc, 0, lambda b, qb: done[('w2', 0, b, qb)] + 4, 1, gX - 12)
    g = gBq + 2
    for ins in [valu('v_mov_b32', v(NEGM + k), 0) for k in range(16)] + attn_init():
        g = tl.place(g, ins, gX - 4)
    for ins in ones_init(): g = tl.place(g + 1, ins, gX - 2)
    g = starts[24]
    hv = [valu('v_lshrrev_b32', vL4, 2, vL16), valu('v_mov_b32', vZERO, 0), valu('v_mov_b32', vONE, 1),
          valu('v_lshl_add_u32', vA0, vL16, 4, sKM0), valu('v_min_u32', vF0, 16, vL16), valu('v_lshlrev_b32', vF0, 24, vF0),
          valu('v_bfe_u32', vP16, vL16, 9, 1), valu('v_bfe_u32', vXO, vL16, 8, 1), valu('v_lshl_add_u32', vP16, vXO, 1, vP16), valu('v_lshlrev_b32', vP16, 4, vP16),
          valu('v_and_b32', vXO, 0xf0, vL16), valu('v_lshl_add_u32', vXO, vXO, 6, vP16)]
    for ins in hv: g = tl.place(g + 1, ins, gX - 30)
    hs = srd(SRD_DBG, s(26, 2), 256) + srd(SRD_OUT, s(24, 2), 2048 * 512 * 2) + srd(SRD_B2, s(22, 2), 1024) + [
          salu('s_lshl_b32', sQ4, sQB, 2), salu('s_lshl_b32', sT0, sQB, 11), salu('s_add_u32', sT0, sT0, MBOX),
          salu('s_lshl_b32', sT1, sG, 8), salu('s_add_u32', sMB, sT0, sT1),
          salu('s_lshl_b32', sT1, sW, 9), salu('s_add_u32', sFL, sT0, sT1), salu('s_lshl_b32', sT1, sG, 2), salu('s_add_u32', sFL, sFL, sT1),
          salu('s_lshl_b32', sT0, sQB, 16), salu('s_lshl_b32', sT1, sG, 13), salu('s_add_u32', sCB, sT0, sT1), salu('s_lshl_b32', sT1, sW, 10), salu('s_add_u32', sCB, sCB, sT1),
          salu('s_lshl_b32', sT1, sW, 14), salu('s_add_u32', sXO, sT0, sT1), salu('s_lshl_b32', sT1, sG, 7), salu('s_add_u32', sXO, sXO, sT1),
          salu('s_mul_i32', sWT, sIDX, 16384)]
    gc = tl.place(max(g + 1, starts[24] + 80), bstore('buffer_store_dword', vZERO, vL4, SRD_WS, sMB, mods=cfg.pmods, tok=[('mbox',)]), gX - 20)
    z.flex.append((hs, starts[24], gc - 1))
    zl = pack_store(tl, z, Zacc, 1, lambda b, qb: done[('w2', 1, b, qb)] + 4, 1, gX + 40)
    fill_xm1(tl, z, gX, N, items, zl + 1)
    tl1, z1 = tl, z
    if cfg.stamps:
        for nm_, g_ in [('ffn1_end', starts[8]), ('q_mid', starts[16]), ('q_end', starts[24]), ('f2a_end', starts[28]), ('f2b_end', gX)] + [(f'st{j}', starts[j]) for j in cfg.xst]:
            tl.gap[g_ - 1] += stamp(nm_)

    WO = ('wd', 'ws', 'wm')
    it0 = Timeline(); add_iter(it0, N, items, 0, first=True, skip_late=WO)
    lp = Timeline(); add_iter(lp, N, items, 1); add_iter(lp, N, items, 0)
    b0 = [i for g_ in it0.gap for i in g_ if i.cls == 'B'][0]
    b0.need += [('mbox',)] + [('P', 1, ch, bp, qb) for ch in range(2) for bp in range(2) for qb in range(4)]
    b0.pre_wait['vm'] = 0
    g = it0.place(60, valu('v_add_u32', vCNT, sSLOW, vONE), 100)
    it0.place(b0.at + 1, I(f"buffer_atomic_add {vCNT}, {vA0}, {SRD_DBG}, {sQ4} offen sc1", 'G', flat(vCNT, vA0, SRD_DBG, sQ4), [], sub='store'), N - 1)
    lp.busy_sh = set(); it0.busy_sh = set()
    te = Timeline(); ze = Sched(te)
    g29 = add_iter(te, N, items, 1, skip_own=('kd', 'ks'), skip_late=WO)
    g30 = add_iter(te, N, items, 0, skip_own=('kd', 'ks', 'vd', 'vs', 'kr'), skip_late=('kd', 'ks') + WO)
    def cnt_load(): return bload('buffer_load_dword', vCNT, vZERO, SRD_DBG, sQ4, mods='sc1')
    te.place(g30 + 40, cnt_load())
    ostages = {}
    for k in range(16): ostages[k] = Stage('wo', k % 8, k // 8)
    assert cfg.la == 8 and cfg.gmap == 1
    late = [(kind, idx) for g, kind, idx in sorted(items, key=lambda t: t[0]) if g >= N and kind in ('exp', 'add', 'cvt')]
    vr = [item('vr', (i, kh, e), 0) for i in range(8) for kh in range(2) for e in range(2)]
    nm_ = 2 * len(cfg.msum_qb)
    B30 = g30 + [g for g, k, i in items if k == 'bar'][0]
    ze.lastD = B30
    while vr:
        i_ = (32 - len(vr)) // 4
        lo = max(ze.lastD + 1, g30 + 64 + nm_ + 8 * i_ + 8)
        c = [g for g in range(lo, te.n()) if te.used(g) == 1 and te.gap[g][0].cls == 'V']
        if not c: break
        te.put(c[0], vr.pop(0)); ze.lastD = c[0]
    mid = []
    for k, (kind, idx) in enumerate(late):
        if k % 4 == 0 and len(vr) > 12: mid.append(vr.pop(0))
        mid.append(item(kind, idx, 0))
    ty = Timeline(); zy = Sched(ty)
    for y in y_order(): ty.add(y_mfma(y, 1, False))
    for ins in vr: zy.D(0, ins)
    rl = [v(NEGM + 2 * k, 2) for k in range(4)]; tt = v(NEGM + 8); bad = v(NEGM + 9); fa = v(NEGM + 10)
    g = 0
    def seqp(lst, g):
        for ins in lst: g = ty.place(g + 1, ins, g + 3)
        return g
    for qb in ADDQ:
        k = ADDQ.index(qb); l_ = rl[qb][0]
        g = seqp([valu('v_add_f32', l_, v(LADD + 2 * k), v(LADD + 2 * k + 1)), valu('v_add_f32', tt, v(LADD + 2 * k), v(LADD + 2 * k + 1)), swap32(l_, tt),
                  valu('v_add_f32', l_, l_, tt), valu('v_mov_b32', tt, l_), swap16(l_, tt), valu('v_add_f32', l_, l_, tt)], g - 1)
    g = max(g, nm_ + 3)
    lsrc = [v(LSUM + 4 * cfg.msum_qb.index(qb)) if qb in cfg.msum_qb else rl[qb][0] for qb in range(4)]
    LO_, HI_ = (127 - 40) << 23, (127 + 40) << 23
    ck = [valu('v_subrev_u32', v(NEGM + 12 + qb), LO_, lsrc[qb]) for qb in range(4)]
    ck += [valu('v_max3_u32', bad, v(NEGM + 12), v(NEGM + 13), v(NEGM + 14)), valu('v_max_u32', bad, bad, v(NEGM + 15)),
           raw(f"v_cmp_lt_u32 vcc, {hex(HI_ - LO_)}, {bad}", 'V', [bad], [VCC])]
    for ins in ck: g = ty.place(g, ins, g + 2) + (ins is ck[3] or ins in ck[4:])
    gcmp = g
    for qb in range(4): g = ty.place(g, valu('v_rcp_f32', rl[qb][0], lsrc[qb]), g + 2) + 1
    ty.put(gcmp + 1, raw(f"s_or_b32 {sT2}, vcc_lo, vcc_hi", 'S', [VCC], [sT2]))
    if cfg.force_slow: ty.put(gcmp + 2, salu('s_mov_b32', sT2, 1))
    ty.put(gcmp, salu('s_lshl_b32', sT0, sW, 2))
    g2 = ty.place(gcmp + 1, valu('v_lshl_add_u32', fa, vL16, 8, sT0), gcmp + 3)
    g2 = ty.place(g2 + 1, valu('v_and_b32', fa, 0x3fff, fa), g2 + 3)
    g2 = ty.place(max(g2, gcmp + 3), valu('v_mov_b32', bad, sT2), max(g2, gcmp + 3) + 2)
    g2 = ty.place(g2 + 1, ds_write('ds_write_b32', fa, bad, 49152, tok=[('flag',)]), g2 + 3)
    gb = ty.place(max(zy.lastD + 5, g2 + 3), barrier(need=[('flag',)], free=[('V', 1)]))
    ty.place(g2, valu('v_add_u32', vHW, sKM0, vL16), gb); ty.place(g2 + 1, valu('v_mov_b32', fa, sKM0), gb)
    zy.lastD = gb
    gf = zy.D(gb + 1, ds_read('ds_read_b128', v(NEGM + 12, 4), fa, 49152, tok=[('flag',)]))
    for g_ in range(4):
        for ins in stage_reads(0, ostages[0], g_): zy.D(nm_ + 32, ins, ty.n() - 1)
    for qb in range(4): g = ty.place(g, valu('v_mov_b32', rl[qb][1], rl[qb][0]), g + 2)
    def norm_unit(sp, qb, packed):
        t8 = v(SB + 8 * ((4 * sp + qb) % 8), 8); o_ = []
        for k in range(8): o_.append(valu('v_accvgpr_read_b32', t8[k], O(2 * sp + k // 4, qb)[k % 4]))
        if packed:
            for k in range(4): o_.append(valu('v_pk_mul_f32', t8[2 * k:2 * k + 2], t8[2 * k:2 * k + 2], rl[qb]))
        else:
            for k in range(8): o_.append(valu('v_mul_f32', t8[k], t8[k], rl[qb][0]))
        for k in range(4): o_.append(valu('v_cvt_pk_bf16_f32', t8[k], t8[2 * k], t8[2 * k + 1]))
        o_.append(ds_write('ds_write_b128', vHW, t8[0:4], sp * 16384 + qb * 1024, tok=[('O',)]))
        return o_
    units = [(sp, qb) for sp in range(4) for qb in range(4)]
    g = max(g + 1, nm_ + 20, gb + 1)
    rest = []
    while units:
        room = sum(max(0, 2 - ty.used(x)) for x in range(g, ty.n()))
        if room < 20: break
        u = norm_unit(*units.pop(0), False)
        for ins in u[:-1]: g = ty.place(g, ins)
        rest.append(u[-1])
    nz = []; A = nz.append; E = nz.extend
    E(stamp('attn_end'))
    A(valu('v_or_b32', tt, v(NEGM + 12), v(NEGM + 13))); A(valu('v_or3_b32', tt, tt, v(NEGM + 14), v(NEGM + 15)))
    if rest: A(rest.pop(0))
    A(valu('v_readfirstlane_b32', sT2, tt)); A(valu('v_readfirstlane_b32', sT3, vCNT))
    A(salu('s_andn2_b32', sT2, sT2, sSLOW))
    A(branch('s_cbranch_scc1', 'L_slow'))
    nz2 = []; A = nz2.append; E = nz2.extend
    A(scmp('s_cmp_lg_u32', sT3, 8)); A(branch('s_cbranch_scc1', 'L_cntwait')); A(label('L_cntok'))
    A(valu('v_add_u32', vA0, 4096, vL16))
    for sp, qb in units:
        u = norm_unit(sp, qb, True)
        E(u[:8])
        if rest: A(rest.pop(0))
        E(u[8:])
    assert not rest
    A(barrier(need=[('O',)]))
    E(stamp('o_xchg'))
    def Bo(j, kk, qb): return a(128 + 32 * (j % 2) + 16 * kk + 4 * qb, 4)
    def oread(j, kk, qb):
        ks = 2 * ostages[j].kp + kk
        return tagw(ds_read('ds_read_b128', Bo(j, kk, qb), vL16, (ks % 4) * 16384 + (ks // 4) * 4096 + qb * 1024, tok=[('O',)]), ('B', j))
    for qb in range(4):
        for kk in range(2): A(oread(0, kk, qb))
    to = Timeline(); zo = Sched(to)
    starts = {}; blk_end = {}; done = {}
    for j in range(16):
        st = ostages[j]; starts[j] = to.n()
        order = [(b, qb) for b in range(4) for qb in range(4)]
        if j == 15: order = [(2 * bp + e, qb) for bp in range(2) for qb in range(4) for e in range(2)]
        for b, qb in order:
            for kk in range(2):
                d = Zacc(st.ch, b, qb)
                m_ = mfma(d, Af(j % 2, b, kk), Bo(j, kk, qb), 0 if st.kp == 0 and kk == 0 else d)
                tagr(m_, Af(j % 2, b, kk), ('A', st.kind, j)); tagr(m_, Bo(j, kk, qb), ('B', j)); tagw(m_, ('acc', 'wo'))
                g = to.add(m_)
            done[(st.ch, b, qb)] = g
            blk_end[(j, b)] = to.n() - 1
    starts[16] = to.n()
    place_ring(to, zo, ostages, starts, blk_end, {j: [(oread(j + 1, kk, qb), 0) for qb in range(4) for kk in range(2)] for j in range(15)})
    pack_store(to, zo, Zacc, 0, lambda b, qb: done[(0, b, qb)] + 4, 0, starts[11])
    if cfg.stamps: to.gap[starts[8] - 1] += stamp('o_mid')
    def flag(ch): return bstore('buffer_store_dword', vONE, vF0, SRD_WS, sFL, ch * 256, mods='sc1')
    g = max(zo.lastG, zo.last_store) + cfg.flag_lag
    while any(i.cls == 'G' for i in to.gap[g]) or to.used(g + 1): g += 1
    to.put(g, waitvm(0)); g = to.put(g + 1, flag(0))
    P2R, P1R, XR, BR = QB, SB, NEGM, NEGM + 8
    def pload(kind, gg, bp, so): return bload('buffer_load_dwordx4', v((P2R if kind else P1R) + 8 * gg + 4 * bp, 4), vA0 if bp else vL16, SRD_WS, so, mods='sc1')
    zo.lastG = g
    for bp in range(2):
        zo.group([], [bload('buffer_load_dwordx4', v(XR + 4 * bp, 4), vXO, SRD_X, sXO, bp * 64)], 0)
    zo.group([salu('s_lshl_b32', sT0, sG, 7)], [bload('buffer_load_dwordx4', v(BR + 4 * bp, 4), vP16, SRD_B2, sT0, bp * 64) for bp in range(2)], 0)
    sPG = [sHS[0], sHS[1], sHS[2], sHS[3], sKO, sVO, sIT, sKV0]
    zo.flex.append(([tagw(salu('s_add_u32', sPG[gg], sCB, (1 << 24) + gg * (1 << 21)), ('p2', gg)) for gg in range(8)], 8, starts[8]))
    for gg in range(8):
        zo.group([], [tagr(pload(1, gg, bp, sPG[gg]), sPG[gg], ('p2', gg)) for bp in range(2)], 0, step=1)
    assert zo.lastG < starts[16] - 2, (zo.lastG, starts[15])
    fin = []; A = fin.append; E = fin.extend
    n_ = to.n(); gl_ = 0
    for bp in range(2):
        zo.flex.append(([salu('s_add_u32', sST[bp], sPB, (8 + bp * 4) * 1024)], starts[14], starts[15]))
        for qb in range(4):
            e, o_ = Zacc(1, 2 * bp, qb), Zacc(1, 2 * bp + 1, qb)
            u = [valu('v_cvt_pk_bf16_f32', e[0], e[0], e[1]), valu('v_cvt_pk_bf16_f32', e[1], e[2], e[3]),
                 valu('v_cvt_pk_bf16_f32', e[2], o_[0], o_[1]), valu('v_cvt_pk_bf16_f32', e[3], o_[2], o_[3]),
                 bstore('buffer_store_dwordx4', e, vL16, SRD_WS, sST[bp], qb * 1024, mods=cfg.pmods)]
            g = done[(1, 2 * bp + 1, qb)] + 4
            g = max(g, gl_)
            fr = [x for x in range(g, n_) if to.used(x) == 0][:3]
            if len(fr) == 3 and not fin:
                to.put(fr[0], u[0]); to.put(fr[0], u[1]); to.put(fr[1], u[2]); to.put(fr[1], u[3]); to.put(fr[2], u[4]); gl_ = fr[1]
            else: E(u)
    E(stamp('mfma_end'))
    vPOLL = vCNT
    def poll(): return bload('buffer_load_dword', vPOLL, vL4, SRD_WS, sMB, mods='sc1')
    A(poll())
    zz = [v(PB + k) for k in range(16)]; ww = [v(PB + 16 + k) for k in range(16)]
    for bp in range(2):
        for R_ in (XR, BR):
            A(swap16(v(R_ + 4 * bp), v(R_ + 4 * bp + 2))); A(swap16(v(R_ + 4 * bp + 1), v(R_ + 4 * bp + 3)))
    def unpack(dst, src):
        for k in range(8):
            A(valu('v_lshlrev_b32', dst[2 * k], 16, v(src + k))); A(valu('v_and_b32', dst[2 * k + 1], 0xffff0000, v(src + k)))
    def accum(dst, src):
        for k in range(8):
            A(valu('v_dot2_f32_bf16', dst[2 * k], v(src + k), sLO, dst[2 * k])); A(valu('v_dot2_f32_bf16', dst[2 * k + 1], v(src + k), sHI, dst[2 * k + 1]))
    unpack(zz, BR)
    for gg in range(8): accum(zz, P2R + 8 * gg)
    A(waitall()); A(flag(1))
    E(stamp('published'))
    A(salu('s_mov_b32', sDONE, 0)); A(salu('s_mov_b32', sSPIN, cfg.spin)); A(salu('s_mov_b32', sT3, -math.log2(math.e)))
    def poll_step(tag):
        A(raw(f"v_cmp_eq_u32 vcc, 1, {vPOLL}", 'V', [vPOLL], [VCC]))
        A(raw(f"s_and_b32 {sNEW}, vcc_lo, 0xff", 'S', [VCC], [sNEW])); A(salu('s_andn2_b32', sNEW, sNEW, sDONE)); A(salu('s_or_b32', sDONE, sDONE, sNEW))
        for gg in range(8):
            A(scmp('s_bitcmp1_b32', sNEW, gg)); A(branch('s_cbranch_scc0', f'L_sk{tag}{gg}'))
            A(salu('s_add_u32', sSO[0], sCB, gg * (1 << 21)))
            for bp in range(2): A(pload(0, gg, bp, sSO[0]))
            A(label(f'L_sk{tag}{gg}'))
    poll_step('a')
    A(poll())
    for k in range(16): A(valu('v_mul_f32', ww[k], sT3, zz[k]))
    for k in range(16): A(valu('v_exp_f32', ww[k], ww[k]))
    for k in range(16): A(valu('v_add_f32', ww[k], 1.0, ww[k]))
    for k in range(16): A(valu('v_rcp_f32', ww[k], ww[k]))
    for k in range(16): A(valu('v_mul_f32', zz[k], zz[k], ww[k]))
    xx = [v(QB + k) for k in range(16)]
    unpack(xx, XR)
    A(label('L_poll'))
    A(waitall())
    poll_step('b')
    A(scmp('s_cmp_eq_u32', sDONE, 0xff)); A(branch('s_cbranch_scc1', 'L_all'))
    A(poll())
    A(salu('s_sub_u32', sSPIN, sSPIN, 1)); A(branch('s_cbranch_scc0', 'L_poll'))
    A(label('L_all'))
    A(waitall())
    E(stamp('gathered'))
    unpack(ww, P1R)
    for gg in range(1, 8): accum(ww, P1R + 8 * gg)
    for k in range(16): A(valu('v_fma_f32', xx[k], ww[k], zz[k], xx[k]))
    for k in range(8): A(valu('v_cvt_pk_bf16_f32', v(XR + k), xx[2 * k], xx[2 * k + 1]))
    for bp in range(2):
        A(swap16(v(XR + 4 * bp), v(XR + 4 * bp + 2))); A(swap16(v(XR + 4 * bp + 1), v(XR + 4 * bp + 3)))
        A(bstore('buffer_store_dwordx4', v(XR + 4 * bp, 4), vXO, SRD_OUT, sXO, bp * 64))
    if cfg.stamps:
        fin += stamp('end'); A(waitall()); fin += stamp('drained')
        A(salu('s_lshl_b32', sT0, s(2), 10)); A(salu('s_lshl_b32', sT1, sW, 8)); A(salu('s_add_u32', sT0, sT0, sT1))
        A(salu('s_add_u32', sT0, sT0, 1 << 26))
        A(bstore('buffer_store_dword', v(0), vL4, SRD_WS, sT0))
    A(label('L_end')); A(raw('s_endpgm', 'J'))
    cw = []; A = cw.append
    A(label('L_cntwait')); A(salu('s_mov_b32', sSPIN, cfg.spin)); A(label('L_cnt1'))
    A(cnt_load()); A(waitvm(0)); A(valu('v_readfirstlane_b32', sT3, vCNT))
    A(scmp('s_cmp_eq_u32', sT3, 8)); A(branch('s_cbranch_scc1', 'L_cntok'))
    A(salu('s_sub_u32', sSPIN, sSPIN, 1)); A(branch('s_cbranch_scc0', 'L_cnt1')); A(branch('s_branch', 'L_cntok'))

    sl = []; A = sl.append; E = sl.extend
    A(label('L_slow'))
    A(waitall())
    A(salu('s_mov_b32', sSLOW, -1)); A(salu('s_mov_b32', sIT, 0)); A(salu('s_mov_b32', sKO, sKV0))
    mx = [v(PB + k) for k in range(4)]
    for qb in range(4): A(valu('v_mov_b32', mx[qb], 0xff800000))
    for k in range(16): A(valu('v_mov_b32', v(NEGM + k), 0))
    sl_loop = []; A = sl_loop.append; E = sl_loop.extend
    A(label('L_max'))
    A(barrier(free=[('K', 0)]))
    sc, dd = kv_group('K', 0); E(sc); E(dd)
    A(barrier(need=[('K', 0)]))
    for kb in range(4):
        for st_ in range(4): A(item('kr', (kb, st_), 0))
    E(x_mfmas())
    for kb in range(4):
        for qb in range(4):
            A(valu('v_max3_f32', mx[qb], S(kb, qb)[0], S(kb, qb)[1], mx[qb])); A(valu('v_max3_f32', mx[qb], S(kb, qb)[2], S(kb, qb)[3], mx[qb]))
    A(salu('s_add_u32', sIT, sIT, 1)); A(scmp('s_cmp_lt_u32', sIT, 32)); A(branch('s_cbranch_scc1', 'L_max'))
    sl2 = []; A = sl2.append; E = sl2.extend
    tt = v(PB + 4)
    for qb in range(4):
        A(valu('v_mov_b32', tt, mx[qb])); A(swap32(mx[qb], tt)); A(valu('v_max_f32', mx[qb], mx[qb], tt))
        A(valu('v_mov_b32', tt, mx[qb])); A(swap16(mx[qb], tt)); A(valu('v_max_f32', mx[qb], mx[qb], tt))
        for r in range(4): A(valu('v_sub_f32', NM(qb)[r], 0, mx[qb]))
    E(attn_init())
    A(salu('s_mov_b32', sKO, sKV0)); A(salu('s_mov_b32', sVO, sKV0))
    A(barrier(free=[('K', 0)]))
    for which, slot in (('K', 0), ('K', 1), ('V', 0)):
        sc, dd = kv_group(which, slot); E(sc); E(dd)
    A(barrier(need=[('K', 0)]))
    for kb in range(4):
        for st_ in range(4): A(item('kr', (kb, st_), 0))
    ts = Timeline(); zs = Sched(ts)
    gs = add_xm1(ts, zs, N, items); fill_xm1(ts, zs, gs, N, items, 0)
    sl3 = [branch('s_branch', 'L_it0')]

    l_it0 = [label('L_it0')]
    pre_loop = [salu('s_mov_b32', sIT, 0), salu('s_mov_b32', sWN, 0)]
    l_loop = [label('L_loop')]
    cnt = [salu('s_add_u32', sIT, sIT, 1), scmp('s_cmp_lt_u32', sIT, 14)]
    back = [branch('s_cbranch_scc1', 'L_loop')]
    st_a = stamp('xm1_end'); st_b = stamp('loop_end')
    def paths():
        head = pro1 + pro2 + pre + tl1.emit() + st_a
        body = l_loop + lp.emit() + back
        att = l_it0 + it0.emit() + body + body + body + st_b + te.emit() + mid + ty.emit() + nz
        main = head + att + nz2 + to.emit() + fin
        slow = att[-400:] + sl + sl_loop + sl_loop + sl2 + ts.emit() + sl3 + att
        return [main, slow, att[-50:] + nz2[:2] + cw + nz2[2:]]
    for p in paths(): pass
    for _ in range(10):
        if not any([insert_waits(p) for p in paths()]): break
    for t_, z_ in ((tl1, z1), (te, ze), (to, zo), (ts, zs)):
        mark_busy(t_); place_flex(t_, z_.flex)
    mark_busy(it0); mark_busy(lp)
    place_flex(it0, [(pre_loop, 0, 30)])
    lastsc = max(g for g in range(lp.n()) if lp.sh[g])
    place_flex(lp, [(cnt, lastsc + 1, lp.n() - 1)])
    finalize(paths())
    check_tags(paths()[0])
    seq = pro1 + pro2 + pre + tl1.emit() + st_a + l_it0 + it0.emit() + l_loop + lp.emit() + back + st_b + te.emit() + mid + ty.emit() + nz + nz2 + to.emit() + fin \
        + cw + sl + sl_loop + sl2 + ts.emit() + sl3
    if cfg.verbose:
        from collections import Counter
        for nm_, t_, cuts in (('tl1', tl1, [0, 224, 480, 736, 848, 960, 1024]), ('it0', it0, [0, N]), ('loop', lp, [0, 2 * N]), ('te', te, [0, N, 2 * N]), ('ty', ty, [0, ty.n()]), ('to', to, [0, 256, 512])):
            e = est_cycles(t_.emit())
            print(nm_, [(sum(c for c, _ in e[x:y]), 16 * (y - x)) for x, y in zip(cuts, cuts[1:])])
            print("    ", Counter(p_ for c, p_ in e if c > 16).most_common(14))
    info = dict(N=N, steady_ovf=ovf, tl1=(tl1.n(), tl1.overflow()), te=(te.n(), te.overflow()), to=(to.n(), to.overflow()),
                nops=sum(i.pre_nop for i in lp.emit()), waits=sum(bool(i.pre_wait) for i in lp.emit()),
                nops1=sum(i.pre_nop for i in tl1.emit()), nopso=sum(i.pre_nop for i in to.emit()))
    return seq, info

def build_k2():
    o = []; A = o.append; E = o.extend
    A(scmp('s_cmp_ge_u32', s(2), 512)); A(branch('s_cbranch_scc1', 'L2_end'))
    A(sload('s_load_dwordx2', s(4, 2), s(0, 2), 0)); A(sload('s_load_dwordx4', s(8, 4), s(0, 2), 72)); A(sload('s_load_dwordx2', s(6, 2), s(0, 2), 96))
    if cfg.stamps: A(raw("s_memrealtime s[36:37]", 'X', [], [s(36, 2)]))
    SX, SO_, SW_, SB_ = s(12, 4), s(16, 4), s(20, 4), s(24, 4)
    vu, vc, vt, vx, vb = v(1), v(2), v(3), v(4), v(5)
    A(valu('v_lshlrev_b32', vu, 4, v(0))); A(salu('s_lshl_b32', s(28), s(2), 12))
    A(valu('v_and_b32', vc, 15, v(0))); A(valu('v_bfe_u32', vt, v(0), 4, 2)); A(valu('v_lshrrev_b32', vx, 6, v(0)))
    A(valu('v_lshl_add_u32', vx, vx, 4, vc)); A(valu('v_lshlrev_b32', vx, 10, vx))
    A(valu('v_lshlrev_b32', vb, 3, vt)); A(valu('v_add_u32', vx, vx, vb))
    A(salu('s_lshr_b32', s(29), s(2), 4)); A(salu('s_lshl_b32', s(29), s(29), 16))
    A(salu('s_and_b32', s(30), s(2), 15)); A(salu('s_lshl_b32', s(30), s(30), 6)); A(salu('s_add_u32', s(29), s(29), s(30)))
    E(srd(SW_, s(6, 2), 1 << 28))
    for kind in (1, 0):
        for g in range(8):
            A(salu('s_add_u32', s(31 + (g % 2)), s(28), kind * (1 << 24) + g * (1 << 21)))
            A(bload('buffer_load_dwordx4', v(16 + 32 * kind + 4 * g, 4), vu, SW_, s(31 + (g % 2))))
        if kind == 1:
            E(srd(SB_, s(8, 2), 1024)); E(srd(SX, s(4, 2), 2048 * 512 * 2))
            A(bload('buffer_load_dwordx2', v(8, 2), vb, SB_, s(30))); A(bload('buffer_load_dwordx2', v(10, 2), vb, SB_, s(30), 32))
    A(bload('buffer_load_dwordx2', v(12, 2), vx, SX, s(29))); A(bload('buffer_load_dwordx2', v(14, 2), vx, SX, s(29), 32))
    E(srd(SO_, s(10, 2), 2048 * 512 * 2))
    A(salu('s_mov_b32', s(33), 0x00003f80)); A(salu('s_mov_b32', s(34), 0x3f800000)); A(salu('s_mov_b32', s(35), -math.log2(math.e)))
    zz = [v(80 + k) for k in range(8)]; yy = [v(88 + k) for k in range(8)]; xx = [v(96 + k) for k in range(8)]
    def unpack(dst, src):
        for k in range(4):
            A(valu('v_lshlrev_b32', dst[2 * k], 16, src[k])); A(valu('v_and_b32', dst[2 * k + 1], 0xffff0000, src[k]))
    def accum(dst, src):
        for k in range(4):
            A(valu('v_dot2_f32_bf16', dst[2 * k], src[k], s(33), dst[2 * k])); A(valu('v_dot2_f32_bf16', dst[2 * k + 1], src[k], s(34), dst[2 * k + 1]))
    unpack(zz, v(48, 4))
    for g in range(1, 8): accum(zz, v(48 + 4 * g, 4))
    accum(zz, v(8, 4))
    for k in range(8): A(valu('v_mul_f32', xx[k], s(35), zz[k]))
    for k in range(8): A(valu('v_exp_f32', xx[k], xx[k]))
    for k in range(8): A(valu('v_add_f32', xx[k], 1.0, xx[k]))
    for k in range(8): A(valu('v_rcp_f32', xx[k], xx[k]))
    for k in range(8): A(valu('v_mul_f32', zz[k], zz[k], xx[k]))
    unpack(yy, v(16, 4))
    for g in range(1, 8): accum(yy, v(16 + 4 * g, 4))
    unpack(xx, v(12, 4))
    for k in range(8): A(valu('v_fma_f32', xx[k], yy[k], zz[k], xx[k]))
    for k in range(4): A(valu('v_cvt_pk_bf16_f32', v(8 + k), xx[2 * k], xx[2 * k + 1]))
    A(bstore('buffer_store_dwordx2', v(8, 2), vx, SO_, s(29))); A(bstore('buffer_store_dwordx2', v(10, 2), vx, SO_, s(29), 32))
    if cfg.stamps:
        A(waitall()); A(raw("s_memrealtime s[38:39]", 'X', [], [s(38, 2)]))
        A(valu('v_mov_b32', v(20), s(36))); A(valu('v_mov_b32', v(21), s(38))); A(valu('v_mov_b32', v(22), 0))
        A(salu('s_lshl_b32', s(28), s(2), 3)); A(salu('s_add_u32', s(28), s(28), (1 << 26) + (1 << 20)))
        A(bstore('buffer_store_dwordx2', v(20, 2), v(22), SW_, s(28)))
    A(label('L2_end')); A(raw('s_endpgm', 'J'))
    finalize([o])
    return o

def kd(name, nv, acc, ns=102):
    return [".p2align 6", f".amdhsa_kernel {name}", f"  .amdhsa_next_free_vgpr {nv}", f"  .amdhsa_next_free_sgpr {ns}",
            f"  .amdhsa_accum_offset {acc}", "  .amdhsa_group_segment_fixed_size 0", "  .amdhsa_kernarg_size 104",
            "  .amdhsa_user_sgpr_count 2", "  .amdhsa_user_sgpr_kernarg_segment_ptr 1", "  .amdhsa_system_sgpr_workgroup_id_x 1",
            ".end_amdhsa_kernel"]

def generate():
    k1, info = build_k1()
    K1 = NAME + "_kernel"
    L = ["; generated by gen.py (hand-written generator): fused LayerNorm + FFN + GQA attention + projections",
         "; @launch grid=(256,1,1) block=(256,1,1) lds=163840",
         '.amdgcn_target "amdgcn-amd-amdhsa--gfx950"', ".text",
         f".globl {K1}", ".p2align 8", f".type {K1},@function", f"{K1}:", "L_codebeg:"] + render(k1) + ["L_codeend:"]
    L += ['.section .rodata,"a"'] + kd(K1, 512, 256)
    return "\n".join(L) + "\n", info

if __name__ == "__main__":
    out = sys.argv[1] if len(sys.argv) > 1 else "k.s"
    for kv in sys.argv[2:]:
        k, val = kv.split("="); setattr(cfg, k, eval(val))
    t, info = generate()
    open(out, "w").write(t)
    open(out + ".stamps", "w").write(" ".join(STAMPS))
    print(info, "lines", t.count("\n"), "stamps", STAMPS)
```

```python
import sys, math
from asmlib import *

NAME = "recurrent_scan__gqa_block_cached__dense_activation_gelu__prompt"
CQ = math.log2(math.e) / math.sqrt(128.0)
KG = math.sqrt(2.0 / math.pi)
ALPHA = -math.log2(math.e) * 2 * KG / CQ
BETA = ALPHA * 0.044715 / (CQ * CQ)

class Cfg:
    msum_qb = (1, 3)
    e0 = 37
    bar_gap = 104
    pat = 'D' * 8 + 'G.D' * 8 + 'G' + 'D' * 32
    force_slow = False
    stamps = False
    pretouch = True
    verbose = False
    gmap = 1
    codetouch = True
    tstride = 64
    la = 8
    dma0 = 8
    tplan = {1: 'qw'}
    tlate = {}
    k0at = (22, 1)
    pmods = 'sc1'
    spin = 1 << 20
    flag_lag = 16
    dbgwg = None
    dbgskip = 1
    xst = ()
cfg = Cfg()

sW, sG, sQB = s(3), s(30), s(31)
SRD_X, SRD_K, SRD_V, SRD_WQ, SRD_W1, SRD_W2, SRD_WO, SRD_WS, SRD_B1 = (s(32 + 4 * i, 4) for i in range(9))
sT0, sT1, sT2, sT3 = s(68), s(69), s(70), s(71)
sSTG = s(72)
sSO = [s(73), s(74)]
sODD = s(75)
sHS = [s(76 + i) for i in range(4)]
sBETA, sCQ = s(80), s(81)
sPB = s(82)
sKO, sVO = s(83), s(84)
sKM0 = s(85)
sIT = s(86)
sSLOW = s(87)
sW2B, sWOB = s(88), s(89)
sST = [s(90), s(91)]
sLO, sHI = s(92), s(93)
sKV0 = s(94)
sIDX, sHF = s(95), s(86)
sTA, sTB = s(14), s(15)
SRD_DBG, SRD_OUT, SRD_B2 = SRD_W1, SRD_WQ, SRD_B1
sWN, sWT, sWS = s(4), s(5), s(6)
sMB, sFL, sCB, sXO, sQ4 = s(7), s(8), s(9), s(10), s(11)
sDONE, sNEW, sSPIN = s(12), s(13), s(16)
MBOX = 1 << 25
vTID = v(0); vL16 = v(1)
vTRA = [v(2 + i) for i in range(4)]
vOW1 = [v(6 + i) for i in range(4)]
vOWQ = [v(10 + i) for i in range(4)]
vKA = [v(14 + i) for i in range(4)]
vVA = [v(18 + i) for i in range(8)]
vOK, vOV = v(26), v(27)
vOL = [v(28 + i) for i in range(4)]
QB, SB, PB, NEGM = 32, 96, 160, 224
vL4, vZERO, vONE, vA0, vCNT, vF0, vXO, vP16 = (v(6 + i) for i in range(8))
vTRF = [v(240 + i) for i in range(4)]; vBF = [v(244), v(245)]
vHW = v(246); vXR = v(247)
vALPHA = v(248)
LSUM, ONES, LADD = 240, 248, 252
def Q(qb, st): return v(QB + 16 * qb + 4 * st, 4)
def S(kb, qb): return v(SB + 16 * kb + 4 * qb, 4)
def P(par, qb, kh): return v(PB + 32 * par + 8 * qb + 4 * kh, 4)
def O(i, qb): return a(16 * i + 4 * qb, 4)
def Kf(kb, st): return a(128 + 16 * kb + 4 * st, 4)
def Vf(i, kh): return a(192 + 8 * i + 4 * kh, 4)
def Af(par, b, kk): return a(192 + 32 * par + 8 * b + 4 * kk, 4)
def NM(qb): return v(NEGM + 4 * qb, 4)
L_V, L_K, L_STG = 0, 32768, 65536

def srd(dst, ptr, nbytes):
    return [salu('s_mov_b32', dst[0], ptr[0]), salu('s_mov_b32', dst[1], ptr[1]),
            salu('s_mov_b32', dst[2], nbytes), salu('s_mov_b32', dst[3], 0x20000)]

NSTAMP = [0]
def stamp(name, entry=False):
    if not cfg.stamps: return []
    n = NSTAMP[0]; NSTAMP[0] += 1
    STAMPS.append(name)
    rd = [raw("s_memtime s[96:97]", 'X', [], [s(96, 2)]), raw("s_memrealtime s[98:99]", 'X', [], [s(98, 2)])]
    wr = [raw(f"v_writelane_b32 v0, s96, {n}", 'V', [s(96), v(0)], [v(0)]),
          raw(f"v_writelane_b32 v0, s98, {32 + n}", 'V', [s(98), v(0)], [v(0)])]
    if entry: return rd, wr
    return rd + wr
STAMPS = []

class Stage:
    def __init__(st, kind, kp, ch, nkk=2):
        st.kind = kind; st.kp = kp; st.ch = ch; st.nkk = nkk

def stage_group(j, st, kk):
    slot = j % 3
    stride = {'w1': 3584, 'wq': 8192, 'w2': 1024, 'wo': 1024}[st.kind]
    srd_ = {'w1': SRD_W1, 'wq': SRD_WQ, 'w2': SRD_W2, 'wo': SRD_WO}[st.kind]
    vo = {'w1': vOW1, 'wq': vOWQ, 'w2': vOL, 'wo': vOL}[st.kind]
    so = sSO[kk]
    off = (64 * st.kp + 32 * kk) * stride + st.ch * 128
    if st.kind == 'w2': s1 = salu('s_add_u32', so, sW2B, off)
    elif st.kind == 'wo': s1 = salu('s_add_u32', so, sWOB, off)
    else: s1 = salu('s_mov_b32', so, off)
    s2 = salu('s_add_u32', M0, sSTG, slot * 8192 + kk * 4096)
    d = [dma(vo[u], srd_, so, u * 1024, tok=[('stg', slot, 2 * kk + u // 2)]) for u in range(4)]
    tagw(s1, (st.kind, j, kk)); tagw(s2, (st.kind, j, kk))
    for u in range(4):
        tagw(d[u], (st.kind, j, u % 2)); tagr(d[u], so, (st.kind, j, kk)); tagr(d[u], M0, (st.kind, j, kk))
    return [s1, s2], d

def stage_reads(j, st, gamma):
    slot = j % 3; kk, e = gamma // 2, gamma % 2
    ad = vTRF if st.kind == 'w1' else vTRA
    r = [ds_read('ds_read_b64_tr_b16', Af(j % 2, b, kk)[2 * e:2 * e + 2], ad[b], slot * 8192 + gamma * 2048, tok=[('stg', slot, gamma)])
         for b in range(4)]
    for i in r:
        tagw(i, ('A', st.kind, j)); i.ltag = (st.kind, j, 1)
        if st.kind == 'wo' and j < 3: i.ltag = None; i.lrd.append(('stgpre',))
    return r

def kv_group(which, slot):
    if which == 'K': so, vo, sr, base = sKO, vOK, SRD_K, L_K
    else: so, vo, sr, base = sVO, vOV, SRD_V, L_V
    sc = [salu('s_add_u32', so, so, 16384), salu('s_and_b32', so, so, 0x7ffff),
          salu('s_add_u32', M0, sKM0, base + slot * 16384)]
    d = [dma(vo, sr, so, u * 1024, tok=[(which, slot)]) for u in range(4)]
    tagw(sc[1], (which, slot)); tagw(sc[2], (which, slot))
    for i in d: tagr(i, so, (which, slot)); tagr(i, M0, (which, slot))
    return sc, d

class Sched:
    def __init__(z, tl):
        z.tl = tl; z.lastD = -1; z.lastG = -2; z.flex = []; tl.busy_sh = set()
    def D(z, lo, ins, dl=None):
        lo = max(lo, z.lastD + 1, 0)
        z.lastD = z.tl.place(lo, ins, deadline=None if dl is None else max(dl, lo)); return z.lastD
    def group(z, sc, dd, los, step=2, sclo=None):
        prev = z.lastG if sclo is None else sclo
        first = None
        for k, ins in enumerate(dd):
            lo = max(los[k] if isinstance(los, list) else los, z.lastG + (step if k or sclo is not None else max(step, 1 + len(sc))), 1)
            z.lastG = z.tl.place(lo, ins, deadline=lo + 5)
            if first is None: first = z.lastG
        if sc: z.flex.append((sc, prev + 1, first - 1))
        return z.lastG

def place_ring(tl, z, stages, starts, blk_end, extra, kvx={}):
    NS = len(stages)
    def base(j, gamma):
        while gamma >= 4 and j + 1 < NS: j += 1; gamma -= 4
        return starts[j] + (gamma * (starts[j + 1] - starts[j])) // 4 - 4
    for f in range(NS + 4):
        for kk in range(2):
            q0 = 4 * (f - 1) + 2 * kk - cfg.la
            if q0 < -1 + 0 or q0 // 4 >= NS: continue
            if q0 < 0: continue
            j, gq = q0 // 4, q0 % 4
            if f < NS and kk < stages[f].nkk:
                sc, dd = stage_group(f, stages[f], kk)
                los = []
                for gamma in (gq, gq + 1):
                    b0, b1 = base(j, gamma), base(j, gamma + 1)
                    los += [b0 + 3, b0 + 3 + (b1 - b0) // 2]
                z.group(sc, dd, [max(x, 2) for x in los])
            for which, slot, lo in kvx.get((j, gq // 2), []):
                if which in 'KV': sc, dd = kv_group(which, slot); z.group(sc, dd, lo)
                else: z.group([], slot, lo)
    for j in range(NS):
        r = j + 1; ex = extra.get(j, []); nex = len(ex)
        for gamma in range(4):
            rds = stage_reads(r, stages[r], gamma) if r < NS and gamma < 2 * stages[r].nkk else []
            lst = [(ins, blk_end.get((j - 1, b), 0)) for b, ins in enumerate(rds)]
            lst += [(i, max(lo, starts[j] - 1)) for i, lo in ex[(gamma * nex) // 4:((gamma + 1) * nex) // 4]]
            b1 = base(j, gamma + 1) if not (j == NS - 1 and gamma == 3) else starts[NS] - 4
            av = [g for g in range(max(base(j, gamma), 0), b1) if tl.used(g) == 0]
            for k, (ins, lo) in enumerate(lst):
                g = av[(k * len(av)) // len(lst)]
                if g < lo:
                    c = [x for x in av if x >= lo]
                    g = min(c, key=lambda x: (tl.used(x), x)) if c else lo
                tl.put(g, ins); z.lastD = max(z.lastD, g)

def place_flex(tl, flex):
    def wrap(g): return g % tl.n() if tl.cyclic else g
    for sc, lo, hi in flex:
        lo = max(lo, 0)
        assert hi >= lo, (sc, lo, hi)
        cand = [g for g in range(lo, hi + 1) if not any(i.cls == 'G' for i in tl.gap[wrap(g)])]
        assert cand, (sc, lo, hi)
        def load(g):
            k = len(tl.sh[wrap(g)]) + (wrap(g) in tl.busy_sh)
            return max(0, k + 1 + tl.used(wrap(g)) - 3) if k else 0
        pick = sorted(sorted(cand, key=lambda g: (load(g), -g))[:len(sc)])
        while len(pick) < len(sc): pick.append(pick[-1])
        for ins, g in zip(sc, pick): tl.put(g, ins)

def mark_busy(tl):
    tl.busy_sh = set()
    for g in range(tl.n()):
        nxt = tl.sh[g] + tl.gap[g] + ([tl.m[g + 1]] if g + 1 < tl.n() else [])
        if nxt and nxt[0].pre_wait: tl.busy_sh.add(g)

def touch(dst, voff, srd_, so, off=0): return bload('buffer_load_dword', dst, voff, srd_, so, off)

def k1_prologue(stages):
    o = []; A = o.append; E = o.extend
    A(scmp('s_cmp_ge_u32', s(2), 256)); A(branch('s_cbranch_scc1', 'L_end'))
    entry_wr = []
    if cfg.stamps:
        rd, entry_wr = stamp('entry', True); E(rd)
    A(sload('s_load_dwordx16', s(4, 16), s(0, 2), 0))
    A(sload('s_load_dwordx8', s(20, 8), s(0, 2), 64))
    A(sload('s_load_dwordx2', s(28, 2), s(0, 2), 96))
    vl, vc, vt, vx = v(232), v(233), v(234), v(235)
    t0, t1, t2, t3 = v(236), v(237), v(238), v(239)
    NSH = 32 // cfg.gmap
    A(valu('v_lshrrev_b32', t0, 6, vTID))
    A(valu('v_and_b32', vl, 63, vTID))
    A(valu('v_readfirstlane_b32', sW, t0))
    A(valu('v_and_b32', vc, 15, vl)); A(valu('v_lshrrev_b32', vt, 4, vl))
    A(valu('v_lshlrev_b32', vL16, 4, vl))
    if cfg.gmap == 1:
        A(salu('s_and_b32', sG, s(2), 7)); A(salu('s_lshr_b32', sQB, s(2), 3)); A(salu('s_mov_b32', sIDX, sQB)); A(salu('s_mov_b32', sHF, 0))
    else:
        A(salu('s_bfe_u32', sHF, s(2), 0x10003)); A(salu('s_and_b32', sG, s(2), 3)); A(salu('s_lshl_b32', sG, sG, 1)); A(salu('s_add_u32', sG, sG, sHF))
        A(salu('s_lshr_b32', sIDX, s(2), 4)); A(salu('s_and_b32', sT0, s(2), 4)); A(salu('s_lshl_b32', sT0, sT0, 2)); A(salu('s_add_u32', sQB, sIDX, sT0))
    xr, xt = v(230), v(231)
    A(valu('v_lshrrev_b32', xr, 2, vl)); A(valu('v_and_b32', xt, 3, vl))
    A(valu('v_lshlrev_b32', vx, 10, xr)); A(valu('v_lshl_add_u32', vx, xt, 4, vx))
    sXA, sXB = sST
    A(salu('s_lshl_b32', sT0, sQB, 16)); A(salu('s_lshl_b32', sT1, sW, 14)); A(salu('s_add_u32', sT0, sT0, sT1))
    A(salu('s_lshl_b32', sT1, sHF, 9)); A(salu('s_add_u32', sXA, sT0, sT1)); A(salu('s_xor_b32', sXB, sXA, 512))
    A(salu('s_and_b32', sODD, sW, 1))
    A(salu('s_lshr_b32', sT2, sW, 1)); A(salu('s_mul_i32', sT2, sT2, 7)); A(salu('s_mul_i32', sT3, sODD, 3)); A(salu('s_add_u32', sT2, sT2, sT3))
    for b in range(4):
        A(salu('s_add_u32', sT0, sODD, b)); A(salu('s_and_b32', sT0, sT0, 3)); A(salu('s_add_u32', sHS[b], sT0, sT2))
    A(valu('v_lshlrev_b32', t3, 3, vt))
    A(valu('v_lshrrev_b32', t1, 3, vTID)); A(valu('v_and_b32', t1, 512 // NSH - 1, t1)); A(valu('v_mul_u32_u24', t2, 3584, t1))
    A(valu('v_and_b32', t0, 7, vTID)); A(valu('v_lshl_add_u32', t2, t0, 6, t2))
    A(salu('s_mul_i32', sT2, sIDX, 512 // NSH * 3584)); A(salu('s_mul_i32', sT1, sG, 448)); A(salu('s_add_u32', sT2, sT2, sT1))
    if cfg.codetouch:
        A(salu('s_getpc_b64', s(100, 2)))
        A(salu('s_lshr_b32', sT0, s(2), 3)); A(salu('s_lshl_b32', sT0, sT0, 11)); A(salu('s_lshl_b32', sT3, sW, 9)); A(salu('s_add_u32', sT0, sT0, sT3))
        A(valu('v_and_b32', t0, 7, vl)); A(valu('v_lshlrev_b32', t0, 6, t0)); A(valu('v_add_u32', t0, sT0, t0))
        A(raw("v_min_u32 v236, L_codeend-L_codebeg-1024, v236", 'V', [t0], [t0]))
        A(I(f"global_load_dword a79, {t0}, s[100:101]", 'G', flat(t0, s(100, 2)), flat(a(79)), sub='load'))
    E(srd(SRD_X, s(4, 2), 2048 * 512 * 2)); E(srd(SRD_W1, s(16, 2), 512 * 1792 * 2))
    def xload(k): return bload('buffer_load_dwordx4', v(QB + 4 * k, 4), vx, SRD_X, sXA if k < 8 else sXB, (k % 8) * 64)
    if cfg.pretouch: A(touch(a(72), t2, SRD_W1, sT2))
    for k in range(8): A(xload(k))
    E(srd(SRD_B1, s(18, 2), 1792 * 2))
    for b in range(4):
        A(salu('s_lshl_b32', sT3, sHS[b], 5)); A(salu('s_add_u32', sT3, sT3, sT1))
        A(bload('buffer_load_dwordx2', a(64 + 2 * b, 2), t3, SRD_B1, sT3))
    rr, sc_, nat = v(228), v(229), v(225)
    A(valu('v_lshrrev_b32', rr, 3, vl))
    A(valu('v_and_b32', t0, 7, vl)); A(valu('v_lshlrev_b32', t1, 1, vt)); A(valu('v_xor_b32', sc_, t0, t1))
    A(valu('v_lshlrev_b32', sc_, 4, sc_))
    A(valu('v_xor_b32', t0, t1, vl)); A(valu('v_lshlrev_b32', vXR, 4, t0))
    A(valu('v_and_b32', t0, 4, rr)); A(valu('v_add_u32', nat, t0, rr))
    A(salu('s_lshr_b32', sT2, sW, 1)); A(salu('s_mul_i32', sT2, sT2, 224))
    A(salu('s_mul_i32', sT3, sODD, 96)); A(salu('s_add_u32', sT2, sT2, sT3)); A(salu('s_add_u32', sT1, sT1, sT2))
    A(valu('v_mul_u32_u24', t0, 3584, nat)); A(valu('v_add3_u32', t0, t0, sc_, sT1))
    rowoff = [0, 16, 4, 20]
    for u in range(4): A(valu('v_add_u32', vOW1[u], rowoff[u] * 3584 - u * 1024, t0))
    A(salu('s_mul_i32', sSTG, sW, 24576)); A(salu('s_add_u32', sSTG, sSTG, L_STG))
    E(srd(SRD_WQ, s(10, 2), 512 * 4096 * 2))
    lp, key = v(226), v(227)
    A(valu('v_lshlrev_b32', lp, 7, xr)); A(valu('v_lshl_add_u32', lp, xt, 3, lp)); A(valu('v_add_u32', lp, sSTG, lp))
    A(valu('v_and_b32', key, 3, rr))
    for b in range(4):
        A(valu('v_xor_b32', t0, b, key)); A(valu('v_lshl_add_u32', vTRA[b], t0, 5, lp))
        A(salu('s_add_u32', sT0, sODD, b)); A(salu('s_and_b32', sT0, sT0, 3))
        A(valu('v_xor_b32', t0, sT0, key)); A(valu('v_lshl_add_u32', vTRF[b], t0, 5, lp))
        A(salu('s_lshr_b32', sT1, sHS[b], 1)); A(salu('s_lshl_b32', sT1, sT1, 12))
        A(salu('s_and_b32', sT3, sHS[b], 1)); A(salu('s_lshl_b32', sT3, sT3, 3)); A(salu('s_add_u32', sHS[b], sT1, sT3))
    A(salu('s_lshl_b32', sT0, sODD, 11)); A(valu('v_add_u32', vBF[0], sT0, vXR))
    A(salu('s_xor_b32', sT0, sT0, 2048)); A(valu('v_add_u32', vBF[1], sT0, vXR))
    A(salu('s_lshl_b32', sT1, sG, 10)); A(salu('s_lshl_b32', sT2, sW, 8)); A(salu('s_add_u32', sT1, sT1, sT2))
    A(valu('v_lshlrev_b32', t0, 13, nat)); A(valu('v_add3_u32', t0, t0, sc_, sT1))
    for u in range(4): A(valu('v_add_u32', vOWQ[u], rowoff[u] * 8192 - u * 1024, t0))
    A(valu('v_lshlrev_b32', t0, 10, rr)); A(valu('v_add3_u32', t0, t0, sc_, sT2))
    for u in range(4): A(valu('v_add_u32', vOL[u], u * 7168, t0))
    A(salu('s_mul_i32', sW2B, sG, 224 * 1024)); A(salu('s_lshl_b32', sWOB, sG, 19))
    E(srd(SRD_K, s(6, 2), 8 * 2048 * 128 * 2)); E(srd(SRD_V, s(8, 2), 8 * 2048 * 128 * 2))
    E(srd(SRD_W2, s(20, 2), 1792 * 512 * 2)); E(srd(SRD_WO, s(12, 2), 4096 * 512 * 2))
    E(srd(SRD_WS, s(28, 2), 1 << 28))
    A(salu('s_lshl_b32', sKM0, sW, 12)); A(salu('s_add_u32', sT0, sWOB, sKM0))
    A(salu('s_lshl_b32', sT1, sW, 2)); A(valu('v_add_u32', t0, sT1, vt)); A(valu('v_xor_b32', t0, t0, vc))
    A(valu('v_lshlrev_b32', t1, 8, vt)); A(valu('v_lshl_add_u32', t0, t0, 4, t1)); A(valu('v_add_u32', vOK, sT0, t0))
    A(salu('s_lshl_b32', sT1, sODD, 2)); A(valu('v_add_u32', t0, sT1, vt)); A(valu('v_lshlrev_b32', t0, 1, t0)); A(valu('v_xor_b32', t0, t0, vc))
    A(valu('v_lshl_add_u32', t0, t0, 4, t1)); A(valu('v_add_u32', vOV, sT0, t0))
    A(valu('v_lshrrev_b32', t0, 2, vc)); A(valu('v_lshlrev_b32', t1, 12, t0))
    A(valu('v_lshl_add_u32', t1, xt, 8, t1)); A(valu('v_add_u32', t1, L_K, t1))
    A(valu('v_lshrrev_b32', t3, 1, vt)); A(valu('v_and_b32', key, 1, vt)); A(valu('v_lshl_add_u32', t3, key, 1, t3))
    A(valu('v_xor_b32', t3, t3, vc))
    for st_ in range(4):
        A(valu('v_xor_b32', lp, 4 * st_, t3)); A(valu('v_lshl_add_u32', vKA[st_], lp, 4, t1))
    A(valu('v_lshl_add_u32', t1, vt, 4, t0)); A(valu('v_lshlrev_b32', t1, 8, t1)); A(valu('v_lshl_add_u32', t1, xt, 3, t1))
    A(valu('v_lshl_add_u32', t3, key, 2, t0))
    for i in range(8):
        A(valu('v_xor_b32', lp, i, t3)); A(valu('v_lshl_add_u32', vVA[i], lp, 5, t1))
    wa, wb = vHW, v(255)
    A(valu('v_lshlrev_b32', t0, 1, xt)); A(valu('v_xor_b32', t0, t0, xr)); A(valu('v_lshl_add_u32', t0, xt, 4, t0)); A(valu('v_lshlrev_b32', t0, 4, t0))
    A(salu('s_lshl_b32', sT0, sW, 10)); A(salu('s_lshl_b32', sT1, sHF, 15)); A(salu('s_add_u32', sT0, sT0, sT1))
    A(valu('v_add_u32', wa, sT0, t0)); A(valu('v_xor_b32', wb, 32768, wa))
    A(salu('s_mov_b32', sBETA, BETA)); A(salu('s_mov_b32', sCQ, CQ))
    A(salu('s_lshl_b32', sPB, sG, 21)); A(salu('s_lshl_b32', sT0, sQB, 16)); A(salu('s_add_u32', sPB, sPB, sT0))
    A(salu('s_lshl_b32', sT0, sW, 14)); A(salu('s_add_u32', sPB, sPB, sT0))
    A(salu('s_mul_i32', sKV0, sIDX, 16384 * cfg.gmap)); A(salu('s_sub_u32', sKV0, sKV0, 16384))
    A(salu('s_mov_b32', sKO, sKV0)); A(salu('s_mov_b32', sVO, sKV0))
    A(salu('s_mov_b32', sSLOW, 0))
    A(salu('s_mov_b32', sLO, 0x00003f80)); A(salu('s_mov_b32', sHI, 0x3f800000))
    tq, tw, tk = v(249), v(250), v(251)
    TS = cfg.tstride
    per = 1024 // TS
    A(valu('v_lshrrev_b32', t0, int(math.log2(per)), vTID)); A(valu('v_lshlrev_b32', t0, 13, t0))
    A(valu('v_and_b32', t1, per - 1, vTID)); A(valu('v_mul_u32_u24', t1, TS, t1)); A(valu('v_add_u32', t0, t0, t1))
    A(salu('s_mul_i32', sT0, sIDX, 512 // NSH * 8192)); A(salu('s_lshl_b32', sT1, sG, 10)); A(salu('s_add_u32', sT0, sT0, sT1))
    A(valu('v_add_u32', tq, sT0, t0))
    A(valu('v_mul_u32_u24', t0, 28 * cfg.gmap, vTID)); A(salu('s_mul_i32', sT0, sIDX, 7168 * cfg.gmap)); A(salu('s_add_u32', sT0, sT0, sW2B))
    A(valu('v_add_u32', tw, sT0, t0))
    A(valu('v_mul_u32_u24', t0, TS, vTID)); A(salu('s_mul_i32', sT0, sIDX, 16384 * cfg.gmap)); A(salu('s_add_u32', sT0, sT0, sWOB))
    A(valu('v_add_u32', tk, sT0, t0))
    nrep = (16384 * cfg.gmap) // (256 * TS)
    tch = {'q': [], 'w': [], 'k': [], 'v': []}
    A(salu('s_mov_b32', sTA, (256 // per) * 8192)); A(salu('s_mov_b32', sTB, 256 * TS))
    assert nrep in (1, 2) or (nrep == 0)
    for r_ in range(max(nrep, 1)):
        tch['q'].append(touch(a(73), tq, SRD_WQ, sTA if r_ else 0))
        tch['k'].append(touch(a(75), tk, SRD_K, sTB if r_ else 0)); tch['v'].append(touch(a(76), tk, SRD_V, sTB if r_ else 0))
    tch['w'].append(touch(a(74), tw, SRD_W2, 0))
    E(entry_wr); E(stamp('setup'))
    for k in range(8, 16): A(xload(k))
    groups = []
    for j in range(3):
        for kk in range(2):
            if 4 * (j - 1) + 2 * kk - cfg.la < 0:
                sc, dd = stage_group(j, stages[j], kk); groups.append(sc + dd[:1]); groups += [[d] for d in dd[1:]]
        if cfg.pretouch:
            for ch_ in cfg.tplan.get(j, ''): groups += [[x_] for x_ in tch[ch_]]
    nm = v(232); D0 = SB
    A(valu('v_lshlrev_b32', nm, 16, v(QB))); A(valu('v_xor_b32', nm, 0x80000000, nm)); A(dpp('v_mov_b32', nm, nm, None, [0, 0, 0, 0]))
    s1 = [v(224, 2), v(226, 2)]; s2 = [v(228, 2), v(230, 2)]
    for st_ in range(16):
        for k in range(4 * st_, 4 * st_ + 4):
            A(valu('v_dot2_f32_bf16', v(D0 + 2 * k), v(QB + k), sLO, nm))
            A(valu('v_dot2_f32_bf16', v(D0 + 2 * k + 1), v(QB + k), sHI, nm))
        for k in range(4 * st_, 4 * st_ + 4):
            d = v(D0 + 2 * k, 2)
            if k < 2: A(valu('v_pk_mul_f32', s2[k], d, d))
            else: A(valu('v_pk_fma_f32', s2[k % 2], d, d, s2[k % 2]))
        for k in range(4 * st_, 4 * st_ + 4):
            d = v(D0 + 2 * k, 2)
            if k in (2, 3): A(valu('v_pk_add_f32', s1[k % 2], d, v(D0 + 2 * (k - 2), 2)))
            elif k > 3: A(valu('v_pk_add_f32', s1[k % 2], d, s1[k % 2]))
        if st_ >= cfg.dma0 and groups: E(groups.pop(0))
    E(stamp('x_in'))
    A(valu('v_pk_add_f32', s1[0], s1[0], s1[1])); A(valu('v_pk_add_f32', s2[0], s2[0], s2[1]))
    a1, a2 = v(224), v(228)
    A(valu('v_add_f32', a1, v(224), v(225))); A(valu('v_add_f32', a2, v(228), v(229)))
    for perm in ([1, 0, 3, 2], [2, 3, 0, 1]):
        A(dpp('v_add_f32', a1, a1, a1, perm)); A(dpp('v_add_f32', a2, a2, a2, perm))
    A(valu('v_mul_f32', a1, 1.0 / 512, a1))
    A(valu('v_mov_b32', v(226), 1e-5)); A(valu('v_fmac_f32', v(226), 1.0 / 512, a2))
    A(raw("v_fma_f32 v226, -v224, v224, v226", 'V', [v(224), v(226)], [v(226)]))
    A(valu('v_max_f32', v(226), 1e-5, v(226)))
    A(valu('v_rsq_f32', v(226), v(226))); A(valu('v_mul_f32', v(226), sCQ, v(226))); A(valu('v_mov_b32', v(227), v(226)))
    A(raw("v_mul_f32 v228, -v224, v226", 'V', [v(224), v(226)], [v(228)])); A(valu('v_mov_b32', v(229), v(228)))
    for st_ in range(16):
        for k in range(4 * st_, 4 * st_ + 4):
            A(valu('v_pk_fma_f32', v(D0 + 2 * k, 2), v(D0 + 2 * k, 2), v(226, 2), v(228, 2)))
        for k in range(4 * st_, 4 * st_ + 4):
            A(valu('v_cvt_pk_bf16_f32', v(QB + k), v(D0 + 2 * k), v(D0 + 2 * k + 1)))
        A(ds_write('ds_write_b128', wa if st_ < 8 else wb, v(QB + 4 * st_, 4), (st_ % 8) * 4096, tok=[('xq',)]))
        if groups: E(groups.pop(0))
    tmp = [v(D0 + k) for k in range(8)]
    for k in range(8): A(valu('v_accvgpr_read_b32', tmp[k], a(64 + k)))
    for k in range(8):
        A(valu('v_lshlrev_b32', v(NEGM + 2 * k), 16, tmp[k])); A(valu('v_and_b32', v(NEGM + 2 * k + 1), 0xffff0000, tmp[k]))
    for k in range(8): A(valu('v_pk_mul_f32', v(NEGM + 2 * k, 2), v(NEGM + 2 * k, 2), s(80, 2), mods="op_sel:[0,1] op_sel_hi:[1,1]"))
    A(valu('v_mov_b32', vALPHA, ALPHA))
    A(barrier(need=[('xq',)]))
    for g_ in range(4): E(stage_reads(0, stages[0], g_))
    for gr in groups: E(gr)
    E(stamp('ln_done'))
    return o, tch

def Bx(kp, kk, qb): return a(32 * (kp % 2) + 16 * kk + 4 * qb, 4)
def Hf(st_, qb): return a({0: 0, 1: 16, 2: 64, 3: 80, 4: 96, 5: 112, 6: 32}[st_] + 4 * qb, 4)
def Hacc(b, qb): return v(SB + 16 * b + 4 * qb, 4)
def Qacc(i, qb): return Q(qb, i // 2) if i % 2 == 0 else v(PB + 16 * qb + 4 * (i // 2), 4)
def Zacc(ch, b, qb):
    if ch == 0: return v(SB + 32 * (b % 2) + 16 * (b // 2) + 4 * qb, 4)
    return v(PB + 32 * (1 - b % 2) + 16 * (b // 2) + 4 * qb, 4)

def pack_store(tl, z, acc, ch, ready, kind, dl=None):
    last = 0
    for bp in range(2):
        so = sST[bp]
        sc = tagw(salu('s_add_u32', so, sPB, kind * (1 << 24) + (ch * 8 + bp * 4) * 1024), (kind, ch, bp))
        first = None
        for qb in range(4):
            e, o_ = acc(ch, 2 * bp, qb), acc(ch, 2 * bp + 1, qb)
            g = max(ready(2 * bp, qb), last)
            tg = ('acc', 'w2' if kind else 'wo')
            def cv(d, src, k): return tagw(tagr(valu('v_cvt_pk_bf16_f32', d, src[k], src[k + 1]), src[k:k + 2], tg), 'pk')
            g = tl.place(g, cv(e[0], e, 0), dl)
            g = tl.place(g, cv(e[1], e, 2), dl)
            g = max(g, ready(2 * bp + 1, qb))
            g = tl.place(g, cv(e[2], o_, 0), dl)
            last = g = tl.place(g, cv(e[3], o_, 2), dl)
            g = tl.place(g + 1, tagr(tagr(bstore('buffer_store_dwordx4', e, vL16, SRD_WS, so, qb * 1024, mods=cfg.pmods, tok=[('P', kind, ch, bp, qb)]), e, 'pk'), so, (kind, ch, bp)), None if dl is None else dl + 8)
            if first is None: first = g
            z.last_store = g
        z.flex.append(([sc], max(first - 6, 0), first - 1))
    return last

def y_order():
    ms = [('m', qb, kh) for qb in cfg.msum_qb for kh in range(2)]
    pv = [('p', i, qb, kh) for i in range(8) for qb in range(4) for kh in range(2)]
    return ms + pv
def x_mfmas(par=None):
    o = []
    for kb in range(4):
        for qb in range(4):
            for st_ in range(4):
                m_ = mfma(S(kb, qb), Kf(kb, st_), Q(qb, st_), NM(qb) if st_ == 0 else S(kb, qb))
                if par is not None:
                    tagr(m_, Kf(kb, st_), ('Kf', 1 - par)); tagr(m_, Q(qb, st_), 'Q'); tagw(m_, ('S', par, st_))
                    if st_: tagr(m_, S(kb, qb), ('S', par, st_ - 1))
                o.append(m_)
    return o
def y_mfma(y, par, first):
    if y[0] == 'm':
        _, qb, kh = y; acc = v(LSUM + 4 * cfg.msum_qb.index(qb), 4)
        return mfma(acc, v(ONES, 4), P(par, qb, kh), 0 if first and kh == 0 else acc)
    _, i, qb, kh = y
    return tagr(tagr(mfma(O(i, qb), Vf(i, kh), P(par, qb, kh), 0 if first and kh == 0 else O(i, qb)), Vf(i, kh), ('Vf', par)), P(par, qb, kh), 'P')
ADDQ = None
def item(kind, idx, par):
    if kind == 'bar': return barrier(need=[('K', par), ('V', 1 - par)], free=[('K', 1 - par), ('V', par)])
    if kind == 'exp':
        kb, qb, r = idx; return tagw(tagr(valu('v_exp_f32', S(kb, qb)[r], S(kb, qb)[r]), S(kb, qb)[r], ('S', par, 3)), ('E', par))
    if kind == 'add':
        kb, qb, r = idx; l = v(LADD + 2 * ADDQ.index(qb) + r % 2); return tagr(valu('v_add_f32', l, S(kb, qb)[r], l), S(kb, qb)[r], ('E', par))
    if kind == 'cvt':
        kb, qb, h = idx
        return tagw(tagr(valu('v_cvt_pk_bf16_f32', P(1 - par, qb, kb // 2)[2 * (kb % 2) + h], S(kb, qb)[2 * h], S(kb, qb)[2 * h + 1]), S(kb, qb)[2 * h:2 * h + 2], ('E', par)), 'P')
    if kind == 'kr':
        kb, st_ = idx; return tagw(ds_read('ds_read_b128', Kf(kb, st_), vKA[st_], par * 16384 + kb * 1024, tok=[('K', par)]), ('Kf', par))
    if kind == 'vr':
        i, kh, e = idx
        return tagw(ds_read('ds_read_b64_tr_b16', Vf(i, kh)[2 * e:2 * e + 2], vVA[i], (1 - par) * 16384 + (8 * kh + 4 * e) * 256, tok=[('V', 1 - par)]), ('Vf', 1 - par))
    if kind == 'kd': return kv_group('K', 1 - par)[1][idx]
    if kind == 'vd': return kv_group('V', par)[1][idx]
    if kind == 'ks': return kv_group('K', 1 - par)[0][idx]
    if kind == 'vs': return kv_group('V', par)[0][idx]
    if kind == 'wd': return dma(vOL[0], SRD_WO, sWS, 0, tok=[('stgpre',)])
    if kind == 'ws':
        return [salu('s_and_b32', sT0, sWN, 1), salu('s_lshl_b32', sT0, sT0, 7), salu('s_lshr_b32', sT1, sWN, 1), salu('s_lshl_b32', sT1, sT1, 13),
                salu('s_add_u32', sT0, sT0, sT1), salu('s_add_u32', sT0, sT0, sWT),
                salu('s_sub_u32', sT1, sWN, 4), salu('s_max_i32', sT1, sT1, 0), salu('s_lshl_b32', sT2, sT1, 13),
                scmp('s_cmp_lt_u32', sWN, 4), salu('s_cselect_b32', sT0, sT0, sT2), salu('s_add_u32', sWS, sT0, sWOB),
                salu('s_lshl_b32', sT1, sT1, 10), salu('s_add_u32', sWN, sWN, 1)][idx]
    if kind == 'wm': return salu('s_add_u32', M0, sSTG, sT1)
    raise KeyError(kind)

def steady_schedule(busy=()):
    global ADDQ
    ADDQ = [q for q in range(4) if q not in cfg.msum_qb]
    tl = Timeline(cyclic=True)
    for m in x_mfmas(): tl.add(m)
    for y in y_order(): tl.add(y_mfma(y, 0, False))
    N = tl.n(); items = []
    def pl(g, kind, idx, dl=None):
        g = tl.place(g, item(kind, idx, 0), dl); items.append((g, kind, idx)); return g
    ex = [(kb, qb, r) for kb in range(4) for qb in range(4) for r in range(4)]
    eg = {}
    for k, e in enumerate(ex): eg[e] = pl(cfg.e0 + (k * N) // 64, 'exp', e)
    B = pl(cfg.bar_gap, 'bar', 0)
    nm_ = 2 * len(cfg.msum_qb)
    rd = [('kr', (kb, st_)) for kb in range(4) for st_ in range(4)] + [('vr', (i, kh, e)) for i in range(8) for kh in range(2) for e in range(2)]
    dm = [('kd', u) for u in range(4)] + [('vd', u) for u in range(4)] + [('wd', 0)]
    free = [g for g in range(B + 1, B + N) if tl.used(g % N) == 0]
    nfree = len(free) - 56
    pat = cfg.pat
    assert pat.count('D') == 48 and pat.count('G') == 9 and len(pat) <= len(free), (pat.count('D'), pat.count('G'), len(pat), len(free))
    gk = []; gv = []
    for g, ch in zip(free, pat):
        if ch == 'D':
            kind, idx = rd.pop(0); pl(g, kind, idx); last = g
            if kind == 'kr': assert g <= N + 16 * idx[0] - 5, (idx, g)
            else: assert 64 + nm_ + 8 * idx[0] + 8 <= g <= N + 64 + 8 * idx[0], (idx, g)
        elif ch == 'G':
            kind, idx = dm.pop(0); pl(g, kind, idx); (gk if kind == 'kd' else gv).append(g)
            if kind == 'wd': assert g >= N
    assert last < B + N - 3, last
    vs = []
    for (kb, qb, r) in ex:
        if r % 2: vs.append((eg[(kb, qb, r)] + 1, 'cvt', (kb, qb, r // 2)))
        if qb in ADDQ: vs.append((eg[(kb, qb, r)] + 1, 'add', (kb, qb, r)))
    cap = [2 - tl.used(g) for g in range(N)]
    assert sum(cap) >= len(vs), (sum(cap), len(vs))
    fifo = []; asg = {}
    allv = sorted([(g0 + p_ * N, p_, k) for p_ in range(5) for k, (g0, _, _) in enumerate(vs)])
    ptr = 0
    for t in range(7 * N):
        while ptr < len(allv) and allv[ptr][0] <= t: fifo.append(allv[ptr]); ptr += 1
        for _ in range(cap[t % N]):
            if fifo:
                _, p_, k = fifo.pop(0); asg[(p_, k)] = t - p_ * N
    for k, (g0, kind, idx) in enumerate(vs):
        g = asg[(3, k)]; assert g == asg[(2, k)]
        tl.put(g, item(kind, idx, 0)); items.append((g, kind, idx))
        assert g < N + 16 * idx[0] + 4 * idx[1] - 1 and g < N + 62, (kind, idx, g)
    tl.busy_sh = set(busy)
    def plsc(kind, n, lo, hi):
        ins = [item(kind, k, 0) for k in range(n)]
        place_flex(tl, [(ins, lo, hi)])
        for k, i in enumerate(ins): items.append((i.at, kind, k))
    plsc('ks', 3, gk[0] - 12, gk[0] - 1)
    plsc('vs', 3, gk[3] + 1, gv[0] - 1)
    plsc('wm', 1, gv[3] + 1, gv[4] - 1)
    gm = items[-1][0]
    plsc('ws', 14, gv[0] + 1, gm - 1)
    assert gv[0] + 1 >= N
    return N, items, tl.overflow()

def add_iter(tl, N, items, par, first=False, skip_own=(), skip_late=()):
    g0 = tl.n()
    for m in x_mfmas(par): tl.add(m)
    for y in y_order(): tl.add(y_mfma(y, par, first))
    for g, kind, idx in items:
        if g >= N and kind not in skip_late: tl.put(g0 + g - N, item(kind, idx, 1 - par))
    for g, kind, idx in items:
        if g < N and kind not in skip_own: tl.put(g0 + g, item(kind, idx, par))
    return g0

def attn_init():
    o = [valu('v_mov_b32', v(LADD + k), 0) for k in range(4)]
    return o
def ones_init():
    t = v(ONES)
    return [valu('v_and_b32', t, 0x30, vL16), raw(f"v_cmp_eq_u32 vcc, 0, {t}", 'V', [t], [VCC]),
            valu('v_mov_b32', v(ONES + 1), 0x3f803f80), valu('v_cndmask_b32', t, 0, v(ONES + 1))] + \
           [valu('v_mov_b32', v(ONES + k), t) for k in range(1, 4)]

def add_xm1(tl, z, N, items, vlo=0):
    g0 = tl.n()
    for m in x_mfmas(1): tl.add(m)
    return g0
def fill_xm1(tl, z, g0, N, items, cvt_lo):
    B = [g for g, k, i in items if k == 'bar'][0]
    sh = g0 + 64 - N
    own = sorted([it for it in items if it[0] < N], key=lambda t: t[0])
    end = g0 + 63
    gb = tl.place(B + sh, item('bar', 0, 1), B + sh + 2)
    lastG = gb; pend = {'ks': [], 'vs': []}
    for g, kind, idx in own:
        if kind in ('kd', 'vd'):
            lo = max(g + sh, lastG + (4 if idx == 0 else 2))
            gg = tl.place(lo, item(kind, idx, 1), min(lo + 3, end))
            if idx == 0:
                k2 = kind[0] + 's'
                z.flex.append(([item(k2, k, 1) for k in range(3)], max(lastG, z.lastG) + 1, gg - 1))
            lastG = gg
    for k2 in ('ks', 'vs'):
        early = [idx for g, kind, idx in own if kind == k2]
        if early and not any(kind == k2[0] + 'd' and idx == 0 for g, kind, idx in own):
            z.flex.append(([item(k2, k, 1) for k in sorted(early)], lastG + 1, end))
        elif any(kind == k2[0] + 'd' and idx == 0 for g, kind, idx in own): assert len(early) == 3
    z.lastD = max(z.lastD, gb)
    for g, kind, idx in own:
        if kind == 'kr':
            z.D(max(g + sh, g0 + 16 * idx[0] + 16), item(kind, idx, 1), end)
        assert kind != 'vr'
    eg = {}; last = g0
    for g, kind, idx in own:
        if kind == 'exp':
            lo = max(g0 + 16 * idx[0] + 4 * idx[1] + 7, last)
            last = eg[idx] = tl.place(min(lo, end - 1), item(kind, idx, 1), end - 1)
    for g, kind, idx in own:
        if kind == 'add': tl.place(eg[idx] + 1, item(kind, idx, 1), end)
        if kind == 'cvt': tl.place(max(eg[(idx[0], idx[1], 2 * idx[2] + 1)] + 1, cvt_lo), item(kind, idx, 1), end)

def build_k1():
    stages = {}
    j = 0
    for kp in range(8): stages[j] = Stage('w1', kp, 0); j += 1
    for kp in range(8):
        for ch in range(2): stages[j] = Stage('wq', kp, ch); j += 1
    for ch in range(2):
        for kp in range(4): stages[j] = Stage('w2', kp, ch, 2 if kp < 3 else 1); j += 1
    NS1 = j
    pro1, tch = k1_prologue(stages); pro2 = []

    N, items, ovf = steady_schedule()
    tl = Timeline(); z = Sched(tl)
    starts = {}; blk_end = {}; done = {}
    for j in range(NS1):
        st = stages[j]; starts[j] = tl.n()
        for b in range(4):
            for qb in range(4):
                if st.kind == 'w1' and b == 3 and qb >= 2: continue
                for kk in range(st.nkk):
                    first = st.kp == 0 and kk == 0
                    if st.kind == 'w1': d = Hacc(b, qb); B_ = Bx(st.kp, kk, qb); c = NM(b) if first else d
                    elif st.kind == 'wq': d = Qacc(4 * st.ch + b, qb); B_ = Bx(st.kp, kk, qb); c = 0 if first else d
                    else: d = Zacc(st.ch, b, qb); B_ = Hf(2 * st.kp + kk, qb); c = 0 if first else d
                    m_ = mfma(d, Af(j % 2, b, kk), B_, c)
                    tagr(m_, Af(j % 2, b, kk), ('A', st.kind, j)); tagr(m_, B_, ('B', st.kind, 2 * st.kp + kk))
                    tagw(m_, ('acc', st.kind))
                    if not first: tagr(m_, d, ('acc', st.kind))
                    g = tl.add(m_)
                done[(st.kind, st.ch, b, qb)] = g
            blk_end[(j, b)] = tl.n() - 1
    starts[NS1] = tl.n()
    gX = add_xm1(tl, z, N, items)
    gBm = starts[8 + 8] + 6
    gBq = starts[8 + 14] + 8
    gB2 = starts[NS1] - 56
    tl.put(gBm, barrier(free=[('xq',)]))
    tl.put(gBq, barrier(need=[('H',)], free=[('xq',)]))
    tl.put(gB2, barrier(need=[('K', 0)], free=[('H',)]))
    pre = []
    def bread(kind, kp, kk, qb):
        st_ = 2 * kp + kk
        if kind == 'w1': return tagw(ds_read('ds_read_b128', Bx(kp, kk, qb), vBF[qb // 2], st_ * 4096 + (qb % 2) * 1024, tok=[('xq',)]), ('B', kind, st_))
        return tagw(ds_read('ds_read_b128', Bx(kp, kk, qb), vXR, st_ * 4096 + qb * 1024, tok=[('xq',)]), ('B', kind, st_))
    for qb in range(4):
        for kk in range(2): pre.append(bread('w1', 0, kk, qb))
    extra = {j: [] for j in range(NS1)}
    for j in range(7): extra[j] = [(bread('w1', j + 1, kk, qb), 0) for qb in range(4) for kk in range(2)]
    extra[7] = [(bread('wq', 0, kk, qb), 0) for qb in range(4) for kk in range(2)]
    for kp in range(7):
        rs = [(bread('wq', kp + 1, kk, qb), 0) for qb in range(4) for kk in range(2)]
        extra[8 + 2 * kp] = rs[:4]; extra[9 + 2 * kp] = rs[4:]
    def hread(st_, qb): return tagw(ds_read('ds_read_b128', Hf(st_, qb), vXR, st_ * 4096 + qb * 1024, tok=[('H',)]), ('B', 'w2', st_))
    hr = [(hread(2 * kp + kk, qb), gBq + 1) for kp in range(3) for qb in range(4) for kk in range(2)] + [(hread(6, qb), starts[24]) for qb in range(4)]
    extra[22] = hr[:3]; extra[23] = hr[3:8]; extra[24] = hr[8:16]; extra[25] = hr[16:24]; extra[26] = hr[24:28]
    kr0 = [(item('kr', (kb, st_), 0), gB2 + 1) for kb in range(4) for st_ in range(4)]
    extra[30] = kr0[:6]; extra[31] = kr0[6:12]
    kvx = {cfg.k0at: [('K', 0, gBq + 1)], (29, 1): [('K', 1, gB2 + 1), ('V', 0, gB2 + 1)]}
    if cfg.pretouch:
        for j_, t_ in cfg.tlate.items(): kvx.setdefault((j_, 0), []).extend(('t', tch[c_], 0) for c_ in t_)
    place_ring(tl, z, stages, starts, blk_end, extra, kvx)
    for ins, lo in kr0[12:]: z.D(gX, ins, gX + 20)
    tmps = [v(249 + k) for k in range(7)]
    tfree = [0] * 7; n_el = 0
    g_lo = starts[8]; g_hi = gBq - 8
    els = [(b, qb) for b in range(4) for qb in range(4) if not (b == 3 and qb >= 2)]
    tot = len(els) * 4
    lastw = gBm
    for (b, qb) in els:
        h = Hacc(b, qb); fin = []
        for r in range(4):
            k = n_el % 7; t = tmps[k]
            g = max(g_lo - 12 + ((g_hi - 30 - g_lo) * n_el) // tot, done[('w1', 0, b, qb)] + 4, tfree[k]); n_el += 1
            chain = [valu('v_mul_f32', t, h[r], h[r]), valu('v_fma_f32', t, t, sBETA, vALPHA), valu('v_mul_f32', t, t, h[r]),
                     valu('v_exp_f32', t, t), valu('v_fma_f32', t, t, sCQ, sCQ), valu('v_rcp_f32', t, t), valu('v_mul_f32', h[r], h[r], t)]
            for ins in chain: g = tl.place(g, ins, g + 5) + 1
            tfree[k] = g; fin.append(g)
        g = tl.place(max(fin[0], fin[1]), valu('v_cvt_pk_bf16_f32', h[0], h[0], h[1]), max(fin[0], fin[1]) + 4)
        g = tl.place(max(fin[2], fin[3], g + 1), valu('v_cvt_pk_bf16_f32', h[1], h[2], h[3]), max(fin[2], fin[3], g + 1) + 4)
        done[('gelu', b, qb)] = g
    for (b, qb) in els:
        h = Hacc(b, qb)
        g = max(done[('gelu', b, qb)] + 1, lastw + 1)
        if qb % 2 == 0: g = tl.place(g, valu('v_add_u32', vHW, sHS[b], vBF[qb // 2]), g + 3) + 1
        lastw = tl.place(g, ds_write('ds_write_b64', vHW, h[0:2], (qb % 2) * 1024, tok=[('H',)]), g + 6)
        assert lastw < gBq, (lastw, gBq)
    zc1 = starts[28]
    lastc = 0; sw = []
    for st_ in range(4):
        for qb in range(4):
            e, o_ = Qacc(2 * st_, qb), Qacc(2 * st_ + 1, qb)
            ch, b = st_ // 2, (2 * st_) % 4
            g = max(done[('wq', ch, b + 1, qb)] + 4, lastc)
            for d_, src, k in ((e[0], e, 0), (e[1], e, 2), (e[2], o_, 0), (e[3], o_, 2)):
                g = tl.place(g, tagr(valu('v_cvt_pk_bf16_f32', d_, src[k], src[k + 1]), src[k:k + 2], ('acc', 'wq')), zc1 - 4)
            lastc = g; sw.append((g + 1, e))
    g = 0
    for k, (lo, e) in enumerate(sw):
        dl = gX - 40 + 2 * k
        g = tl.place(max(lo, g), tagw(swap16(e[0], e[2]), 'Q'), max(dl, lo)); g = tl.place(g + 1, tagw(swap16(e[1], e[3]), 'Q'), max(dl + 1, g + 1))
    pack_store(tl, z, Zacc, 0, lambda b, qb: done[('w2', 0, b, qb)] + 4, 1, gX - 12)
    g = gBq + 2
    for ins in [valu('v_mov_b32', v(NEGM + k), 0) for k in range(16)] + attn_init():
        g = tl.place(g, ins, gX - 4)
    for ins in ones_init(): g = tl.place(g + 1, ins, gX - 2)
    g = starts[24]
    hv = [valu('v_lshrrev_b32', vL4, 2, vL16), valu('v_mov_b32', vZERO, 0), valu('v_mov_b32', vONE, 1),
          valu('v_lshl_add_u32', vA0, vL16, 4, sKM0), valu('v_min_u32', vF0, 16, vL16), valu('v_lshlrev_b32', vF0, 24, vF0),
          valu('v_bfe_u32', vP16, vL16, 9, 1), valu('v_bfe_u32', vXO, vL16, 8, 1), valu('v_lshl_add_u32', vP16, vXO, 1, vP16), valu('v_lshlrev_b32', vP16, 4, vP16),
          valu('v_and_b32', vXO, 0xf0, vL16), valu('v_lshl_add_u32', vXO, vXO, 6, vP16)]
    for ins in hv: g = tl.place(g + 1, ins, gX - 30)
    hs = srd(SRD_DBG, s(26, 2), 256) + srd(SRD_OUT, s(24, 2), 2048 * 512 * 2) + srd(SRD_B2, s(22, 2), 1024) + [
          salu('s_lshl_b32', sQ4, sQB, 2), salu('s_add_u32', sQ4, sQ4, 128), salu('s_lshl_b32', sT0, sQB, 11), salu('s_add_u32', sT0, sT0, MBOX),
          salu('s_lshl_b32', sT1, sG, 8), salu('s_add_u32', sMB, sT0, sT1),
          salu('s_lshl_b32', sT1, sW, 9), salu('s_add_u32', sFL, sT0, sT1), salu('s_lshl_b32', sT1, sG, 2), salu('s_add_u32', sFL, sFL, sT1),
          salu('s_lshl_b32', sT0, sQB, 16), salu('s_lshl_b32', sT1, sG, 13), salu('s_add_u32', sCB, sT0, sT1), salu('s_lshl_b32', sT1, sW, 10), salu('s_add_u32', sCB, sCB, sT1),
          salu('s_lshl_b32', sT1, sW, 14), salu('s_add_u32', sXO, sT0, sT1), salu('s_lshl_b32', sT1, sG, 7), salu('s_add_u32', sXO, sXO, sT1),
          salu('s_mul_i32', sWT, sIDX, 16384)]
    gc = tl.place(max(g + 1, starts[24] + 80), bstore('buffer_store_dword', vZERO, vL4, SRD_WS, sMB, mods=cfg.pmods, tok=[('mbox',)]), gX - 20)
    z.flex.append((hs, starts[24], gc - 1))
    zl = pack_store(tl, z, Zacc, 1, lambda b, qb: done[('w2', 1, b, qb)] + 4, 1, gX + 40)
    fill_xm1(tl, z, gX, N, items, zl + 1)
    tl1, z1 = tl, z
    if cfg.stamps:
        for nm_, g_ in [('ffn1_end', starts[8]), ('q_mid', starts[16]), ('q_end', starts[24]), ('f2a_end', starts[28]), ('f2b_end', gX)] + [(f'st{j}', starts[j]) for j in cfg.xst]:
            tl.gap[g_ - 1] += stamp(nm_)

    WO = ('wd', 'ws', 'wm')
    it0 = Timeline(); add_iter(it0, N, items, 0, first=True, skip_late=WO)
    lp = Timeline(); add_iter(lp, N, items, 1); add_iter(lp, N, items, 0)
    b0 = [i for g_ in it0.gap for i in g_ if i.cls == 'B'][0]
    b0.need += [('mbox',)] + [('P', 1, ch, bp, qb) for ch in range(2) for bp in range(2) for qb in range(4)]
    b0.pre_wait['vm'] = 0
    g = it0.place(60, valu('v_add_u32', vCNT, sSLOW, vONE), 100)
    it0.place(b0.at + 1, I(f"buffer_atomic_add {vCNT}, {vA0}, {SRD_DBG}, {sQ4} offen sc1", 'G', flat(vCNT, vA0, SRD_DBG, sQ4), [], sub='store'), N - 1)
    lp.busy_sh = set(); it0.busy_sh = set()
    te = Timeline(); ze = Sched(te)
    g29 = add_iter(te, N, items, 1, skip_own=('kd', 'ks'), skip_late=WO)
    g30 = add_iter(te, N, items, 0, skip_own=('kd', 'ks', 'vd', 'vs', 'kr'), skip_late=('kd', 'ks') + WO)
    def cnt_load(): return bload('buffer_load_dword', vCNT, vZERO, SRD_DBG, sQ4, mods='sc1')
    te.place(g30 + 40, cnt_load())
    ostages = {}
    for k in range(16): ostages[k] = Stage('wo', k % 8, k // 8)
    assert cfg.la == 8 and cfg.gmap == 1
    late = [(kind, idx) for g, kind, idx in sorted(items, key=lambda t: t[0]) if g >= N and kind in ('exp', 'add', 'cvt')]
    vr = [item('vr', (i, kh, e), 0) for i in range(8) for kh in range(2) for e in range(2)]
    nm_ = 2 * len(cfg.msum_qb)
    B30 = g30 + [g for g, k, i in items if k == 'bar'][0]
    ze.lastD = B30
    while vr:
        i_ = (32 - len(vr)) // 4
        lo = max(ze.lastD + 1, g30 + 64 + nm_ + 8 * i_ + 8)
        c = [g for g in range(lo, te.n()) if te.used(g) == 1 and te.gap[g][0].cls == 'V']
        if not c: break
        te.put(c[0], vr.pop(0)); ze.lastD = c[0]
    mid = []
    for k, (kind, idx) in enumerate(late):
        if k % 4 == 0 and len(vr) > 12: mid.append(vr.pop(0))
        mid.append(item(kind, idx, 0))
    ty = Timeline(); zy = Sched(ty)
    for y in y_order(): ty.add(y_mfma(y, 1, False))
    for ins in vr: zy.D(0, ins)
    rl = [v(NEGM + 2 * k, 2) for k in range(4)]; tt = v(NEGM + 8); bad = v(NEGM + 9); fa = v(NEGM + 10)
    g = 0
    def seqp(lst, g):
        for ins in lst: g = ty.place(g + 1, ins, g + 3)
        return g
    for qb in ADDQ:
        k = ADDQ.index(qb); l_ = rl[qb][0]
        g = seqp([valu('v_add_f32', l_, v(LADD + 2 * k), v(LADD + 2 * k + 1)), valu('v_add_f32', tt, v(LADD + 2 * k), v(LADD + 2 * k + 1)), swap32(l_, tt),
                  valu('v_add_f32', l_, l_, tt), valu('v_mov_b32', tt, l_), swap16(l_, tt), valu('v_add_f32', l_, l_, tt)], g - 1)
    g = max(g, nm_ + 3)
    lsrc = [v(LSUM + 4 * cfg.msum_qb.index(qb)) if qb in cfg.msum_qb else rl[qb][0] for qb in range(4)]
    LO_, HI_ = (127 - 40) << 23, (127 + 40) << 23
    ck = [valu('v_subrev_u32', v(NEGM + 12 + qb), LO_, lsrc[qb]) for qb in range(4)]
    ck += [valu('v_max3_u32', bad, v(NEGM + 12), v(NEGM + 13), v(NEGM + 14)), valu('v_max_u32', bad, bad, v(NEGM + 15)),
           raw(f"v_cmp_lt_u32 vcc, {hex(HI_ - LO_)}, {bad}", 'V', [bad], [VCC])]
    for ins in ck: g = ty.place(g, ins, g + 2) + (ins is ck[3] or ins in ck[4:])
    gcmp = g
    for qb in range(4): g = ty.place(g, valu('v_rcp_f32', rl[qb][0], lsrc[qb]), g + 2) + 1
    ty.put(gcmp + 1, raw(f"s_or_b32 {sT2}, vcc_lo, vcc_hi", 'S', [VCC], [sT2]))
    if cfg.force_slow: ty.put(gcmp + 2, salu('s_mov_b32', sT2, 1))
    ty.put(gcmp, salu('s_lshl_b32', sT0, sW, 2))
    g2 = ty.place(gcmp + 1, valu('v_lshl_add_u32', fa, vL16, 8, sT0), gcmp + 3)
    g2 = ty.place(g2 + 1, valu('v_and_b32', fa, 0x3fff, fa), g2 + 3)
    g2 = ty.place(max(g2, gcmp + 3), valu('v_mov_b32', bad, sT2), max(g2, gcmp + 3) + 2)
    g2 = ty.place(g2 + 1, ds_write('ds_write_b32', fa, bad, 49152, tok=[('flag',)]), g2 + 3)
    gb = ty.place(max(zy.lastD + 5, g2 + 3), barrier(need=[('flag',)], free=[('V', 1)]))
    ty.place(g2, valu('v_add_u32', vHW, sKM0, vL16), gb); ty.place(g2 + 1, valu('v_mov_b32', fa, sKM0), gb)
    zy.lastD = gb
    gf = zy.D(gb + 1, ds_read('ds_read_b128', v(NEGM + 12, 4), fa, 49152, tok=[('flag',)]))
    for g_ in range(4):
        for ins in stage_reads(0, ostages[0], g_): zy.D(nm_ + 32, ins, ty.n() - 1)
    for qb in range(4): g = ty.place(g, valu('v_mov_b32', rl[qb][1], rl[qb][0]), g + 2)
    def norm_unit(sp, qb, packed):
        t8 = v(SB + 8 * ((4 * sp + qb) % 8), 8); o_ = []
        for k in range(8): o_.append(valu('v_accvgpr_read_b32', t8[k], O(2 * sp + k // 4, qb)[k % 4]))
        if packed:
            for k in range(4): o_.append(valu('v_pk_mul_f32', t8[2 * k:2 * k + 2], t8[2 * k:2 * k + 2], rl[qb]))
        else:
            for k in range(8): o_.append(valu('v_mul_f32', t8[k], t8[k], rl[qb][0]))
        for k in range(4): o_.append(valu('v_cvt_pk_bf16_f32', t8[k], t8[2 * k], t8[2 * k + 1]))
        o_.append(ds_write('ds_write_b128', vHW, t8[0:4], sp * 16384 + qb * 1024, tok=[('O',)]))
        return o_
    units = [(sp, qb) for sp in range(4) for qb in range(4)]
    g = max(g + 1, nm_ + 20, gb + 1)
    rest = []
    while units:
        room = sum(max(0, 2 - ty.used(x)) for x in range(g, ty.n()))
        if room < 20: break
        u = norm_unit(*units.pop(0), False)
        for ins in u[:-1]: g = ty.place(g, ins)
        rest.append(u[-1])
    nz = []; A = nz.append; E = nz.extend
    E(stamp('attn_end'))
    A(valu('v_or_b32', tt, v(NEGM + 12), v(NEGM + 13))); A(valu('v_or3_b32', tt, tt, v(NEGM + 14), v(NEGM + 15)))
    if rest: A(rest.pop(0))
    A(valu('v_readfirstlane_b32', sT2, tt)); A(valu('v_readfirstlane_b32', sT3, vCNT))
    A(salu('s_andn2_b32', sT2, sT2, sSLOW))
    A(branch('s_cbranch_scc1', 'L_slow'))
    nz2 = []; A = nz2.append; E = nz2.extend
    A(scmp('s_cmp_lt_u32', sT3, 8)); A(branch('s_cbranch_scc1', 'L_cntwait')); A(label('L_cntok'))
    A(valu('v_add_u32', vA0, 4096, vL16))
    for sp, qb in units:
        u = norm_unit(sp, qb, True)
        E(u[:8])
        if rest: A(rest.pop(0))
        E(u[8:])
    assert not rest
    A(barrier(need=[('O',)]))
    E(stamp('o_xchg'))
    def Bo(j, kk, qb): return a(128 + 32 * (j % 2) + 16 * kk + 4 * qb, 4)
    def oread(j, kk, qb):
        ks = 2 * ostages[j].kp + kk
        return tagw(ds_read('ds_read_b128', Bo(j, kk, qb), vL16, (ks % 4) * 16384 + (ks // 4) * 4096 + qb * 1024, tok=[('O',)]), ('B', j))
    for qb in range(4):
        for kk in range(2): A(oread(0, kk, qb))
    to = Timeline(); zo = Sched(to)
    starts = {}; blk_end = {}; done = {}
    for j in range(16):
        st = ostages[j]; starts[j] = to.n()
        order = [(b, qb) for b in range(4) for qb in range(4)]
        if j == 15: order = [(2 * bp + e, qb) for bp in range(2) for qb in range(4) for e in range(2)]
        for b, qb in order:
            for kk in range(2):
                d = Zacc(st.ch, b, qb)
                m_ = mfma(d, Af(j % 2, b, kk), Bo(j, kk, qb), 0 if st.kp == 0 and kk == 0 else d)
                tagr(m_, Af(j % 2, b, kk), ('A', st.kind, j)); tagr(m_, Bo(j, kk, qb), ('B', j)); tagw(m_, ('acc', 'wo'))
                g = to.add(m_)
            done[(st.ch, b, qb)] = g
            blk_end[(j, b)] = to.n() - 1
    starts[16] = to.n()
    place_ring(to, zo, ostages, starts, blk_end, {j: [(oread(j + 1, kk, qb), 0) for qb in range(4) for kk in range(2)] for j in range(15)})
    pack_store(to, zo, Zacc, 0, lambda b, qb: done[(0, b, qb)] + 4, 0, starts[11])
    if cfg.stamps: to.gap[starts[8] - 1] += stamp('o_mid')
    def flag(ch): return bstore('buffer_store_dword', vONE, vF0, SRD_WS, sFL, ch * 256, mods='sc1')
    g = max(zo.lastG, zo.last_store) + cfg.flag_lag
    while any(i.cls == 'G' for i in to.gap[g]) or to.used(g + 1): g += 1
    to.put(g, waitvm(0)); g = to.put(g + 1, flag(0))
    P2R, P1R, XR, BR = QB, SB, NEGM, NEGM + 8
    def pload(kind, gg, bp, so): return bload('buffer_load_dwordx4', v((P2R if kind else P1R) + 8 * gg + 4 * bp, 4), vA0 if bp else vL16, SRD_WS, so, mods='sc1')
    zo.lastG = g
    for bp in range(2):
        zo.group([], [bload('buffer_load_dwordx4', v(XR + 4 * bp, 4), vXO, SRD_X, sXO, bp * 64)], 0)
    zo.group([salu('s_lshl_b32', sT0, sG, 7)], [bload('buffer_load_dwordx4', v(BR + 4 * bp, 4), vP16, SRD_B2, sT0, bp * 64) for bp in range(2)], 0)
    sPG = [sHS[0], sHS[1], sHS[2], sHS[3], sKO, sVO, sIT, sKV0]
    zo.flex.append(([tagw(salu('s_add_u32', sPG[gg], sCB, (1 << 24) + gg * (1 << 21)), ('p2', gg)) for gg in range(8)], 8, starts[8]))
    for gg in range(8):
        zo.group([], [tagr(pload(1, gg, bp, sPG[gg]), sPG[gg], ('p2', gg)) for bp in range(2)], 0, step=1)
    assert zo.lastG < starts[16] - 2, (zo.lastG, starts[15])
    fin = []; A = fin.append; E = fin.extend
    n_ = to.n(); gl_ = 0
    for bp in range(2):
        zo.flex.append(([salu('s_add_u32', sST[bp], sPB, (8 + bp * 4) * 1024)], starts[14], starts[15]))
        for qb in range(4):
            e, o_ = Zacc(1, 2 * bp, qb), Zacc(1, 2 * bp + 1, qb)
            u = [valu('v_cvt_pk_bf16_f32', e[0], e[0], e[1]), valu('v_cvt_pk_bf16_f32', e[1], e[2], e[3]),
                 valu('v_cvt_pk_bf16_f32', e[2], o_[0], o_[1]), valu('v_cvt_pk_bf16_f32', e[3], o_[2], o_[3]),
                 bstore('buffer_store_dwordx4', e, vL16, SRD_WS, sST[bp], qb * 1024, mods=cfg.pmods)]
            g = done[(1, 2 * bp + 1, qb)] + 4
            g = max(g, gl_)
            fr = [x for x in range(g, n_) if to.used(x) == 0][:3]
            if len(fr) == 3 and not fin:
                to.put(fr[0], u[0]); to.put(fr[0], u[1]); to.put(fr[1], u[2]); to.put(fr[1], u[3]); to.put(fr[2], u[4]); gl_ = fr[1]
            else: E(u)
    E(stamp('mfma_end'))
    vPOLL = vCNT
    def poll(): return bload('buffer_load_dword', vPOLL, vL4, SRD_WS, sMB, mods='sc1')
    A(poll())
    zz = [v(PB + k) for k in range(16)]; ww = [v(PB + 16 + k) for k in range(16)]
    for bp in range(2):
        for R_ in (XR, BR):
            A(swap16(v(R_ + 4 * bp), v(R_ + 4 * bp + 2))); A(swap16(v(R_ + 4 * bp + 1), v(R_ + 4 * bp + 3)))
    def unpack(dst, src):
        for k in range(8):
            A(valu('v_lshlrev_b32', dst[2 * k], 16, v(src + k))); A(valu('v_and_b32', dst[2 * k + 1], 0xffff0000, v(src + k)))
    def accum(dst, src):
        for k in range(8):
            A(valu('v_dot2_f32_bf16', dst[2 * k], v(src + k), sLO, dst[2 * k])); A(valu('v_dot2_f32_bf16', dst[2 * k + 1], v(src + k), sHI, dst[2 * k + 1]))
    unpack(zz, BR)
    for gg in range(8): accum(zz, P2R + 8 * gg)
    A(waitall()); A(flag(1))
    E(stamp('published'))
    A(salu('s_mov_b32', sDONE, 0)); A(salu('s_mov_b32', sSPIN, cfg.spin)); A(salu('s_mov_b32', sT3, -math.log2(math.e)))
    def poll_step(tag):
        A(raw(f"v_cmp_eq_u32 vcc, 1, {vPOLL}", 'V', [vPOLL], [VCC]))
        A(raw(f"s_and_b32 {sNEW}, vcc_lo, 0xff", 'S', [VCC], [sNEW])); A(salu('s_andn2_b32', sNEW, sNEW, sDONE)); A(salu('s_or_b32', sDONE, sDONE, sNEW))
        for gg in range(8):
            A(scmp('s_bitcmp1_b32', sNEW, gg)); A(branch('s_cbranch_scc0', f'L_sk{tag}{gg}'))
            A(salu('s_add_u32', sSO[0], sCB, gg * (1 << 21)))
            for bp in range(2): A(pload(0, gg, bp, sSO[0]))
            A(label(f'L_sk{tag}{gg}'))
    poll_step('a')
    A(poll())
    for k in range(16): A(valu('v_mul_f32', ww[k], sT3, zz[k]))
    for k in range(16): A(valu('v_exp_f32', ww[k], ww[k]))
    for k in range(16): A(valu('v_add_f32', ww[k], 1.0, ww[k]))
    for k in range(16): A(valu('v_rcp_f32', ww[k], ww[k]))
    for k in range(16): A(valu('v_mul_f32', zz[k], zz[k], ww[k]))
    xx = [v(QB + k) for k in range(16)]
    unpack(xx, XR)
    A(label('L_poll'))
    A(waitall())
    poll_step('b')
    A(scmp('s_cmp_eq_u32', sDONE, 0xff)); A(branch('s_cbranch_scc1', 'L_all'))
    A(poll())
    A(salu('s_sub_u32', sSPIN, sSPIN, 1)); A(branch('s_cbranch_scc0', 'L_poll'))
    A(label('L_all'))
    A(waitall())
    E(stamp('gathered'))
    unpack(ww, P1R)
    for gg in range(1, 8): accum(ww, P1R + 8 * gg)
    for k in range(16): A(valu('v_fma_f32', xx[k], ww[k], zz[k], xx[k]))
    for k in range(8): A(valu('v_cvt_pk_bf16_f32', v(XR + k), xx[2 * k], xx[2 * k + 1]))
    for bp in range(2):
        A(swap16(v(XR + 4 * bp), v(XR + 4 * bp + 2))); A(swap16(v(XR + 4 * bp + 1), v(XR + 4 * bp + 3)))
        A(bstore('buffer_store_dwordx4', v(XR + 4 * bp, 4), vXO, SRD_OUT, sXO, bp * 64))
    if cfg.stamps:
        fin += stamp('end'); A(waitall()); fin += stamp('drained')
        A(salu('s_lshl_b32', sT0, s(2), 10)); A(salu('s_lshl_b32', sT1, sW, 8)); A(salu('s_add_u32', sT0, sT0, sT1))
        A(salu('s_add_u32', sT0, sT0, 1 << 26))
        A(bstore('buffer_store_dword', v(0), vL4, SRD_WS, sT0))
        if cfg.dbgwg is not None:
            A(raw("v_readlane_b32 s96, v0, 32", 'V', [v(0)], [s(96)])); A(valu('v_subrev_u32', v(0), s(96), v(0)))
            A(valu('v_subrev_u32', vA0, 128 + 4 * cfg.dbgskip, vL4)); A(scmp('s_cmp_eq_u32', s(2), cfg.dbgwg)); A(salu('s_cselect_b32', sT0, sKM0, 4096))
            A(raw(f"v_cmp_gt_u32 vcc, 64, {vA0}", 'V', [vA0], [VCC])); A(valu('v_mov_b32', vF0, 4096)); A(valu('v_cndmask_b32', vA0, vF0, vA0))
            A(valu('v_add_u32', vA0, sT0, vA0))
            A(bstore('buffer_store_dword', v(0), vA0, SRD_DBG, 0))
    A(label('L_end')); A(raw('s_endpgm', 'J'))
    cw = []; A = cw.append
    A(label('L_cntwait')); A(salu('s_mov_b32', sSPIN, cfg.spin)); A(label('L_cnt1'))
    A(cnt_load()); A(waitvm(0)); A(valu('v_readfirstlane_b32', sT3, vCNT))
    A(scmp('s_cmp_ge_u32', sT3, 8)); A(branch('s_cbranch_scc1', 'L_cntok'))
    A(salu('s_sub_u32', sSPIN, sSPIN, 1)); A(branch('s_cbranch_scc0', 'L_cnt1')); A(branch('s_branch', 'L_cntok'))

    sl = []; A = sl.append; E = sl.extend
    A(label('L_slow'))
    A(waitall())
    A(salu('s_mov_b32', sSLOW, -1)); A(salu('s_mov_b32', sIT, 0)); A(salu('s_mov_b32', sKO, sKV0))
    mx = [v(PB + k) for k in range(4)]
    for qb in range(4): A(valu('v_mov_b32', mx[qb], 0xff800000))
    for k in range(16): A(valu('v_mov_b32', v(NEGM + k), 0))
    sl_loop = []; A = sl_loop.append; E = sl_loop.extend
    A(label('L_max'))
    A(barrier(free=[('K', 0)]))
    sc, dd = kv_group('K', 0); E(sc); E(dd)
    A(barrier(need=[('K', 0)]))
    for kb in range(4):
        for st_ in range(4): A(item('kr', (kb, st_), 0))
    E(x_mfmas())
    for kb in range(4):
        for qb in range(4):
            A(valu('v_max3_f32', mx[qb], S(kb, qb)[0], S(kb, qb)[1], mx[qb])); A(valu('v_max3_f32', mx[qb], S(kb, qb)[2], S(kb, qb)[3], mx[qb]))
    A(salu('s_add_u32', sIT, sIT, 1)); A(scmp('s_cmp_lt_u32', sIT, 32)); A(branch('s_cbranch_scc1', 'L_max'))
    sl2 = []; A = sl2.append; E = sl2.extend
    tt = v(PB + 4)
    for qb in range(4):
        A(valu('v_mov_b32', tt, mx[qb])); A(swap32(mx[qb], tt)); A(valu('v_max_f32', mx[qb], mx[qb], tt))
        A(valu('v_mov_b32', tt, mx[qb])); A(swap16(mx[qb], tt)); A(valu('v_max_f32', mx[qb], mx[qb], tt))
        for r in range(4): A(valu('v_sub_f32', NM(qb)[r], 0, mx[qb]))
    E(attn_init())
    A(salu('s_mov_b32', sKO, sKV0)); A(salu('s_mov_b32', sVO, sKV0))
    A(barrier(free=[('K', 0)]))
    for which, slot in (('K', 0), ('K', 1), ('V', 0)):
        sc, dd = kv_group(which, slot); E(sc); E(dd)
    A(barrier(need=[('K', 0)]))
    for kb in range(4):
        for st_ in range(4): A(item('kr', (kb, st_), 0))
    ts = Timeline(); zs = Sched(ts)
    gs = add_xm1(ts, zs, N, items); fill_xm1(ts, zs, gs, N, items, 0)
    sl3 = [branch('s_branch', 'L_it0')]

    l_it0 = [label('L_it0')]
    pre_loop = [salu('s_mov_b32', sIT, 0), salu('s_mov_b32', sWN, 0)]
    l_loop = [label('L_loop')]
    cnt = [salu('s_add_u32', sIT, sIT, 1), scmp('s_cmp_lt_u32', sIT, 14)]
    back = [branch('s_cbranch_scc1', 'L_loop')]
    st_a = stamp('xm1_end'); st_b = stamp('loop_end')
    def paths():
        head = pro1 + pro2 + pre + tl1.emit() + st_a
        body = l_loop + lp.emit() + back
        att = l_it0 + it0.emit() + body + body + body + st_b + te.emit() + mid + ty.emit() + nz
        main = head + att + nz2 + to.emit() + fin
        slow = att[-400:] + sl + sl_loop + sl_loop + sl2 + ts.emit() + sl3 + att
        return [main, slow, att[-50:] + nz2[:2] + cw + nz2[2:]]
    for p in paths(): pass
    for _ in range(10):
        if not any([insert_waits(p) for p in paths()]): break
    for t_, z_ in ((tl1, z1), (te, ze), (to, zo), (ts, zs)):
        mark_busy(t_); place_flex(t_, z_.flex)
    mark_busy(it0); mark_busy(lp)
    place_flex(it0, [(pre_loop, 0, 30)])
    lastsc = max(g for g in range(lp.n()) if lp.sh[g])
    place_flex(lp, [(cnt, lastsc + 1, lp.n() - 1)])
    finalize(paths())
    check_tags(paths()[0])
    seq = pro1 + pro2 + pre + tl1.emit() + st_a + l_it0 + it0.emit() + l_loop + lp.emit() + back + st_b + te.emit() + mid + ty.emit() + nz + nz2 + to.emit() + fin \
        + cw + sl + sl_loop + sl2 + ts.emit() + sl3
    if cfg.verbose:
        from collections import Counter
        for nm_, t_, cuts in (('tl1', tl1, [0, 224, 480, 736, 848, 960, 1024]), ('it0', it0, [0, N]), ('loop', lp, [0, 2 * N]), ('te', te, [0, N, 2 * N]), ('ty', ty, [0, ty.n()]), ('to', to, [0, 256, 512])):
            e = est_cycles(t_.emit())
            print(nm_, [(sum(c for c, _ in e[x:y]), 16 * (y - x)) for x, y in zip(cuts, cuts[1:])])
            print("    ", Counter(p_ for c, p_ in e if c > 16).most_common(14))
    info = dict(N=N, steady_ovf=ovf, tl1=(tl1.n(), tl1.overflow()), te=(te.n(), te.overflow()), to=(to.n(), to.overflow()),
                nops=sum(i.pre_nop for i in lp.emit()), waits=sum(bool(i.pre_wait) for i in lp.emit()),
                nops1=sum(i.pre_nop for i in tl1.emit()), nopso=sum(i.pre_nop for i in to.emit()))
    return seq, info

def build_k2():
    o = []; A = o.append; E = o.extend
    A(scmp('s_cmp_ge_u32', s(2), 512)); A(branch('s_cbranch_scc1', 'L2_end'))
    A(sload('s_load_dwordx2', s(4, 2), s(0, 2), 0)); A(sload('s_load_dwordx4', s(8, 4), s(0, 2), 72)); A(sload('s_load_dwordx2', s(6, 2), s(0, 2), 96))
    if cfg.stamps: A(raw("s_memrealtime s[36:37]", 'X', [], [s(36, 2)]))
    SX, SO_, SW_, SB_ = s(12, 4), s(16, 4), s(20, 4), s(24, 4)
    vu, vc, vt, vx, vb = v(1), v(2), v(3), v(4), v(5)
    A(valu('v_lshlrev_b32', vu, 4, v(0))); A(salu('s_lshl_b32', s(28), s(2), 12))
    A(valu('v_and_b32', vc, 15, v(0))); A(valu('v_bfe_u32', vt, v(0), 4, 2)); A(valu('v_lshrrev_b32', vx, 6, v(0)))
    A(valu('v_lshl_add_u32', vx, vx, 4, vc)); A(valu('v_lshlrev_b32', vx, 10, vx))
    A(valu('v_lshlrev_b32', vb, 3, vt)); A(valu('v_add_u32', vx, vx, vb))
    A(salu('s_lshr_b32', s(29), s(2), 4)); A(salu('s_lshl_b32', s(29), s(29), 16))
    A(salu('s_and_b32', s(30), s(2), 15)); A(salu('s_lshl_b32', s(30), s(30), 6)); A(salu('s_add_u32', s(29), s(29), s(30)))
    E(srd(SW_, s(6, 2), 1 << 28))
    for kind in (1, 0):
        for g in range(8):
            A(salu('s_add_u32', s(31 + (g % 2)), s(28), kind * (1 << 24) + g * (1 << 21)))
            A(bload('buffer_load_dwordx4', v(16 + 32 * kind + 4 * g, 4), vu, SW_, s(31 + (g % 2))))
        if kind == 1:
            E(srd(SB_, s(8, 2), 1024)); E(srd(SX, s(4, 2), 2048 * 512 * 2))
            A(bload('buffer_load_dwordx2', v(8, 2), vb, SB_, s(30))); A(bload('buffer_load_dwordx2', v(10, 2), vb, SB_, s(30), 32))
    A(bload('buffer_load_dwordx2', v(12, 2), vx, SX, s(29))); A(bload('buffer_load_dwordx2', v(14, 2), vx, SX, s(29), 32))
    E(srd(SO_, s(10, 2), 2048 * 512 * 2))
    A(salu('s_mov_b32', s(33), 0x00003f80)); A(salu('s_mov_b32', s(34), 0x3f800000)); A(salu('s_mov_b32', s(35), -math.log2(math.e)))
    zz = [v(80 + k) for k in range(8)]; yy = [v(88 + k) for k in range(8)]; xx = [v(96 + k) for k in range(8)]
    def unpack(dst, src):
        for k in range(4):
            A(valu('v_lshlrev_b32', dst[2 * k], 16, src[k])); A(valu('v_and_b32', dst[2 * k + 1], 0xffff0000, src[k]))
    def accum(dst, src):
        for k in range(4):
            A(valu('v_dot2_f32_bf16', dst[2 * k], src[k], s(33), dst[2 * k])); A(valu('v_dot2_f32_bf16', dst[2 * k + 1], src[k], s(34), dst[2 * k + 1]))
    unpack(zz, v(48, 4))
    for g in range(1, 8): accum(zz, v(48 + 4 * g, 4))
    accum(zz, v(8, 4))
    for k in range(8): A(valu('v_mul_f32', xx[k], s(35), zz[k]))
    for k in range(8): A(valu('v_exp_f32', xx[k], xx[k]))
    for k in range(8): A(valu('v_add_f32', xx[k], 1.0, xx[k]))
    for k in range(8): A(valu('v_rcp_f32', xx[k], xx[k]))
    for k in range(8): A(valu('v_mul_f32', zz[k], zz[k], xx[k]))
    unpack(yy, v(16, 4))
    for g in range(1, 8): accum(yy, v(16 + 4 * g, 4))
    unpack(xx, v(12, 4))
    for k in range(8): A(valu('v_fma_f32', xx[k], yy[k], zz[k], xx[k]))
    for k in range(4): A(valu('v_cvt_pk_bf16_f32', v(8 + k), xx[2 * k], xx[2 * k + 1]))
    A(bstore('buffer_store_dwordx2', v(8, 2), vx, SO_, s(29))); A(bstore('buffer_store_dwordx2', v(10, 2), vx, SO_, s(29), 32))
    if cfg.stamps:
        A(waitall()); A(raw("s_memrealtime s[38:39]", 'X', [], [s(38, 2)]))
        A(valu('v_mov_b32', v(20), s(36))); A(valu('v_mov_b32', v(21), s(38))); A(valu('v_mov_b32', v(22), 0))
        A(salu('s_lshl_b32', s(28), s(2), 3)); A(salu('s_add_u32', s(28), s(28), (1 << 26) + (1 << 20)))
        A(bstore('buffer_store_dwordx2', v(20, 2), v(22), SW_, s(28)))
    A(label('L2_end')); A(raw('s_endpgm', 'J'))
    finalize([o])
    return o

def kd(name, nv, acc, ns=102):
    return [".p2align 6", f".amdhsa_kernel {name}", f"  .amdhsa_next_free_vgpr {nv}", f"  .amdhsa_next_free_sgpr {ns}",
            f"  .amdhsa_accum_offset {acc}", "  .amdhsa_group_segment_fixed_size 0", "  .amdhsa_kernarg_size 104",
            "  .amdhsa_user_sgpr_count 2", "  .amdhsa_user_sgpr_kernarg_segment_ptr 1", "  .amdhsa_system_sgpr_workgroup_id_x 1",
            ".end_amdhsa_kernel"]

def generate():
    k1, info = build_k1()
    K1 = NAME + "_kernel"
    L = ["; generated by gen.py (hand-written generator): fused LayerNorm + FFN + GQA attention + projections",
         "; @launch grid=(256,1,1) block=(256,1,1) lds=163840",
         '.amdgcn_target "amdgcn-amd-amdhsa--gfx950"', ".text",
         f".globl {K1}", ".p2align 8", f".type {K1},@function", f"{K1}:", "L_codebeg:"] + render(k1) + ["L_codeend:"]
    L += ['.section .rodata,"a"'] + kd(K1, 512, 256)
    return "\n".join(L) + "\n", info

if __name__ == "__main__":
    out = sys.argv[1] if len(sys.argv) > 1 else "k.s"
    for kv in sys.argv[2:]:
        k, val = kv.split("="); setattr(cfg, k, eval(val))
    t, info = generate()
    open(out, "w").write(t)
    open(out + ".stamps", "w").write(" ".join(STAMPS))
    print(info, "lines", t.count("\n"), "stamps", STAMPS)
```
